```python
import torch

def _softmax(x, axis=-1):
    return torch.softmax(x, dim=axis)
def _gelu(x):
    return torch.nn.functional.gelu(x, approximate="tanh")
def _silu(x):
    return torch.nn.functional.silu(x)
def _sigmoid(x):
    return torch.sigmoid(x)
def _layernorm(x, axis=-1, eps=1e-5):
    m = x.mean(dim=axis, keepdim=True)
    v = x.var(dim=axis, keepdim=True, unbiased=False)
    return (x - m) / torch.sqrt(v + eps)
def _scatter_add(tgt, idx, src, axis=0):
    return tgt.clone().index_add_(axis, idx, src)
def _segment_sum(src, seg, n):
    out = torch.zeros((n,) + src.shape[1:], dtype=src.dtype)
    return out.index_add_(0, seg, src)
def _pad(x, pw):
    flat = tuple(v for pair in reversed(pw) for v in pair)
    return torch.nn.functional.pad(x, flat)

kernel_name = 'parallel_sum__sliding_block_cached__glu_gated_bilinear__decode'

def setup_inputs():

    _w = (lambda a: (lambda t: t.to(torch.bfloat16) if t.is_floating_point() else t)(torch.as_tensor(a)))
    def _A_setup():
        B, Sq, D = 1, 1, 512
        Hq, Hkv, Sk, Dh = 32, 8, 65536, 128
        assert Hq % Hkv == 0, (Hq, Hkv)
        return {
            "x": _w((lambda *s: torch.randn(*s, dtype=torch.bfloat16) * 0.05)(B, Sq, D)),
            "k_cache": _w((lambda *s: torch.randn(*s, dtype=torch.bfloat16) * 1.6)(B, Hkv, Sk, Dh)),
            "v_cache": _w((lambda *s: torch.randn(*s, dtype=torch.bfloat16) * 0.8)(B, Hkv, Sk, Dh)),
            "wq": _w((lambda *s: torch.randn(*s, dtype=torch.bfloat16) * 1.6)(D, Hq * Dh) * (D ** -0.5)),
            "wo": _w((lambda *s: torch.randn(*s, dtype=torch.bfloat16) * 0.8)(Hq * Dh, D) * ((Hq * Dh) ** -0.5)),
        }
    _A_in = _A_setup()

    def _B_setup():
        B, S, D, F = 1, 1, 512, 1792
        return {
            "x": _w((lambda *s: torch.randn(*s, dtype=torch.bfloat16) * 0.05)(B, S, D)),
            "w_gate": _w((lambda *s: torch.randn(*s, dtype=torch.bfloat16) * 0.4)(D, F) * (D ** -0.5)),
            "w_up": _w((lambda *s: torch.randn(*s, dtype=torch.bfloat16) * 0.4)(D, F) * (D ** -0.5)),
            "w_down": _w((lambda *s: torch.randn(*s, dtype=torch.bfloat16) * 0.4)(F, D) * (F ** -0.5)),
        }
    _B_in = _B_setup()

    return {
        "A_x": _A_in["x"],
        "A_k_cache": _A_in["k_cache"],
        "A_v_cache": _A_in["v_cache"],
        "A_wq": _A_in["wq"],
        "A_wo": _A_in["wo"],
        "B_x": _B_in["x"],
        "B_w_gate": _B_in["w_gate"],
        "B_w_up": _B_in["w_up"],
        "B_w_down": _B_in["w_down"],
    }

def reference(A_x, A_k_cache, A_v_cache, A_wq, A_wo, B_x, B_w_gate, B_w_up, B_w_down):
    def _A_ref(x, k_cache, v_cache, wq, wo):
        B, Sq, D = x.shape
        Hq, Dh = 32, 128
        Hkv, Sk = k_cache.shape[1], k_cache.shape[2]
        W = min(4096, max(256, Sk // 4))
        rep = Hq // Hkv
        q = (lambda x, *d: x.permute(*d))((x @ wq).reshape(B, Sq, Hq, Dh), 0, 2, 1, 3)
        k = (lambda x, n, axis: torch.repeat_interleave(x, n, dim=axis))(k_cache[:, :, Sk - W:, :], rep, axis=1)
        v = (lambda x, n, axis: torch.repeat_interleave(x, n, dim=axis))(v_cache[:, :, Sk - W:, :], rep, axis=1)
        scores = torch.einsum("bhqd,bhkd->bhqk", q, k) * (Dh ** -0.5)
        p = _softmax(scores, axis=-1)
        o = torch.einsum("bhqk,bhkd->bhqd", p, v)
        return (lambda x, *d: x.permute(*d))(o, 0, 2, 1, 3).reshape(B, Sq, Hq * Dh) @ wo

    def _B_ref(x, w_gate, w_up, w_down):
        g = torch.einsum("bsd,df->bsf", x, w_gate)
        u = torch.einsum("bsd,df->bsf", x, w_up)
        h = g * u
        return torch.einsum("bsf,fd->bsd", h, w_down)

    x = A_x
    xn = _layernorm(x, axis=-1)
    return x + _A_ref(xn, A_k_cache, A_v_cache, A_wq, A_wo) + _B_ref(xn, B_w_gate, B_w_up, B_w_down)
```

```python
import re

TRANS = ("v_exp_f32", "v_log_f32", "v_rcp_f32", "v_rsq_f32", "v_sqrt_f32", "v_sin_f32", "v_cos_f32")

def _regs(tok, kind):
    tok = tok.strip()
    tok = tok.lstrip("-")
    if tok.startswith("abs(") and tok.endswith(")"):
        tok = tok[4:-1]
    if tok.startswith("|") and tok.endswith("|"):
        tok = tok[1:-1]
    m = re.fullmatch(kind + r"(\d+)", tok)
    if m:
        return {int(m.group(1))}
    m = re.fullmatch(kind + r"\[(\d+):(\d+)\]", tok)
    if m:
        return set(range(int(m.group(1)), int(m.group(2)) + 1))
    if kind == "s":
        if tok == "vcc": return {"vcc"}
        if tok == "m0": return {"m0"}
        if tok in ("exec", "exec_lo", "exec_hi"): return {"exec"}
    return set()

class Ins:
    def __init__(self, text):
        self.text = text
        t = text.split(";")[0].strip()
        self.label = None
        self.op = ""
        self.kind = "none"
        self.vdef = set(); self.vuse = set(); self.sdef = set(); self.suse = set()
        self.srcc = set(); self.ab = set()
        self.states = 0
        self.target = None
        self.lds_dma = False
        if not t or t.startswith("."):
            return
        if t.endswith(":"):
            self.label = t[:-1]; self.kind = "label"; return
        parts = t.split(None, 1)
        self.op = op = parts[0]
        rest = parts[1] if len(parts) > 1 else ""
        ops = [o.strip() for o in rest.split(",")] if rest else []
        mods = ""
        if ops:
            sp = ops[-1].split(None, 1)
            ops[-1] = sp[0]
            mods = sp[1] if len(sp) > 1 else ""
        self.states = 1
        V = lambda o: _regs(o, "v"); S = lambda o: _regs(o, "s")
        if op == "s_nop":
            self.kind = "nop"; self.states = int(ops[0], 0) + 1; return
        if op.startswith("s_cbranch") or op == "s_branch":
            self.kind = "branch"; self.target = ops[0]
            if "vcc" in op: self.suse = {"vcc"}
            return
        if op.startswith("s_"):
            self.kind = "salu"
            if op in ("s_waitcnt", "s_barrier", "s_endpgm", "s_setprio", "s_sleep"):
                return
            if op.startswith("s_cmp"):
                for o in ops: self.suse |= S(o)
                return
            if op.startswith("s_load") or op in ("s_memrealtime", "s_memtime", "s_getreg_b32"):
                self.kind = "smem"
                self.sdef = S(ops[0])
                for o in ops[1:]: self.suse |= S(o)
                return
            self.sdef = S(ops[0])
            for o in ops[1:]: self.suse |= S(o)
            if "saveexec" in op: self.sdef |= {"exec"}; self.suse |= {"exec"}
            return
        if op.startswith("v_mfma"):
            self.kind = "mfma"
            self.vdef = V(ops[0]); self.ab = V(ops[1]) | V(ops[2]); self.srcc = V(ops[3])
            self.vuse = self.ab | self.srcc
            self.passes = 8 if "32x32" in op else 4
            return
        if op.startswith("v_"):
            self.kind = "valu"
            self.trans = op.replace("_e32", "").replace("_e64", "") in TRANS
            self.dpp = ("row_" in text) or ("quad_perm" in text)
            self.perm = op.startswith("v_permlane")
            self.rdlane = op.startswith("v_readlane") or op.startswith("v_readfirstlane")
            if op.startswith("v_cmp"):
                self.sdef = S(ops[0])
                for o in ops[1:]:
                    self.vuse |= V(o); self.suse |= S(o)
                return
            if self.rdlane:
                self.sdef = S(ops[0]); self.vuse = V(ops[1])
                for o in ops[2:]: self.suse |= S(o)
                return
            if self.perm:
                self.vdef = V(ops[0]) | V(ops[1]); self.vuse = set(self.vdef); return
            self.vdef = V(ops[0])
            srcs = ops[1:]
            if "_co_" in op:
                self.sdef = S(ops[1]); srcs = ops[2:]
            for o in srcs:
                self.vuse |= V(o); self.suse |= S(o)
            if op.startswith("v_cndmask") and len(ops) == 3: self.suse |= {"vcc"}
            if op.startswith(("v_fmac", "v_writelane", "v_dot2c", "v_pk_fmac")) or self.dpp:
                self.vuse |= self.vdef
            return
        if op.startswith("ds_"):
            self.kind = "ds"
            if op.startswith(("ds_read", "ds_bpermute", "ds_permute", "ds_swizzle")):
                self.vdef = V(ops[0])
                for o in ops[1:]: self.vuse |= V(o)
            else:
                for o in ops: self.vuse |= V(o)
            return
        if op.startswith(("buffer_", "global_")):
            self.kind = "vmem"
            allm = mods + " " + " ".join(ops)
            self.lds_dma = bool(re.search(r"\blds\b", text.split(";")[0])) or "load_lds" in op
            if "load" in op and not self.lds_dma:
                self.vdef = V(ops[0])
                for o in ops[1:]:
                    self.vuse |= V(o); self.suse |= S(o)
            else:
                for o in ops:
                    self.vuse |= V(o); self.suse |= S(o)
                self.wide_store = ("store" in op) and ("x4" in op or "x3" in op)
                if self.wide_store:
                    self.sdata = V(ops[0]) if op.startswith("buffer_") else V(ops[1])
            if self.lds_dma: self.suse |= {"m0"}
            return
        raise ValueError("unknown instruction: " + text)

def need(p, c):
    n = 0
    if p.kind == "valu":
        w = p.vdef
        if c.kind == "valu":
            if c.dpp and (w & c.vuse): n = max(n, 2)
            if c.perm and (w & c.vuse): n = max(n, 2)
            if c.rdlane and (w & c.vuse): n = max(n, 1)
            if p.trans and (w & c.vuse): n = max(n, 1)
            if p.sdef & c.suse: n = max(n, 4 if c.rdlane or c.op.startswith("v_writelane") else 2)
        if c.kind == "mfma" and (w & c.vuse): n = max(n, 2)
        if c.kind in ("vmem", "ds") and p.trans and (w & c.vuse): n = max(n, 1)
        if c.kind == "vmem" and (p.sdef & c.suse): n = max(n, 5)
        if c.kind in ("salu", "smem") and (p.sdef & c.suse): n = max(n, 1)
    if p.kind == "mfma":
        big = p.passes == 8
        if c.kind == "mfma":
            if p.vdef & c.ab: n = max(n, 12 if big else 8)
            if p.vdef & c.srcc and p.vdef != c.srcc: n = max(n, 10 if big else 6)
            if p.vdef & c.vdef and p.vdef != c.srcc: n = max(n, 12 if big else 8)
        if c.kind in ("valu", "vmem", "ds"):
            if p.vdef & (c.vuse | c.vdef): n = max(n, 12 if big else 8)
            if c.kind == "valu" and (p.srcc & c.vdef): n = max(n, 7 if big else 3)
    if p.kind == "salu" and "m0" in p.sdef and c.kind == "vmem" and c.lds_dma: n = max(n, 1)
    if p.kind == "salu" and "exec" in p.sdef and c.kind == "valu" and (c.dpp or c.perm): n = max(n, 1)
    if p.kind == "vmem" and getattr(p, "wide_store", False):
        if c.kind == "valu" and (p.sdata & c.vdef): n = max(n, 2)
        if c.kind in ("vmem", "ds", "mfma") and (p.sdata & c.vdef): n = max(n, 2)
    return n

WINDOW = 14

def _pad_for(prev, c):
    dist = 0; pad = 0
    for p in reversed(prev):
        if p.states == 0: continue
        req = need(p, c)
        if req > dist: pad = max(pad, req - dist)
        dist += p.states
        if dist >= WINDOW: break
    return pad

def hazard_pass(lines):
    ins = [Ins(l) for l in lines]
    out = []
    for c in ins:
        if c.states and c.kind not in ("nop",):
            pad = _pad_for(out, c)
            while pad > 0:
                k = min(pad, 8)
                out.append(Ins(f"    s_nop {k-1}"))
                pad -= k
        out.append(c)
    changed = True
    while changed:
        changed = False
        labels = {x.label: i for i, x in enumerate(out) if x.label}
        for i, b in enumerate(out):
            if b.kind != "branch" or b.target not in labels: continue
            t = labels[b.target]
            path = out[max(0, i - 40):i + 1]
            j = t + 1; seen = 0
            while j < len(out) and seen < WINDOW:
                c = out[j]
                if c.states:
                    pad = _pad_for(path, c) if c.kind != "nop" else 0
                    if pad > 0:
                        out.insert(t + 1, Ins(f"    s_nop {min(pad,8)-1}"))
                        changed = True
                        break
                    path = path + [c]; seen += c.states
                    if c.kind == "branch" and c.op == "s_branch": break
                j += 1
            if changed: break
    return [x.text for x in out]

class Asm:
    def __init__(self):
        self.l = []
    def __call__(self, s=""):
        for line in s.strip("\n").split("\n"):
            line = line.strip()
            if not line: continue
            self.l.append(line if line.endswith(":") else "    " + line)
    def text(self, hazards=True):
        return "\n".join(hazard_pass(self.l) if hazards else self.l) + "\n"
```

```python
import sys
from asmlib import Asm

KNAME = "parallel_sum__sliding_block_cached__glu_gated_bilinear__decode_kernel"
HEADER = """; Fused decode block: out = x + Attn(LN(x)) + BilinearGLU(LN(x)); one launch, 256 workgroups x 256 threads.
"""
WS_NONCE = 0
WS_QS  = 0x10000
WS_GUS = 0x20000
WS_OPS = 0x40000
WS_OPD = 0x80000
WS_FIN = 0x100000
WS_DBG = 0x200000
WS_SIZE = 0x400000
L_K, L_V, L_WQ, L_WG, L_WU = 0, 32768, 65536, 81920, 90112
L_XN = 98304
L_Q = L_XN + 1024
L_OP = L_Q + 1280
OP_H, OP_W = 528, 2112
L_ST = L_OP + 4 * OP_W
L_VEC = L_ST + 128
LDS_SIZE = L_VEC + 128
MASK = 0xFFFFF000
SC = 0.08838834764831845 * 1.4426950408889634
import struct
def f2u(x): return struct.unpack("<I", struct.pack("<f", x))[0]

class RA:
    def __init__(self, start): self.n = start
    def __call__(self, k=1, align=1):
        self.n = (self.n + align - 1) // align * align
        r = self.n; self.n += k; return r

def gen(stamps=False, cap=200000, opts=None):
    o = dict(kwait=True)
    if opts: o.update(opts)
    a = Asm()
    V = RA(1)
    vr = lambda b, n: f"v[{b}:{b+n-1}]"
    sX, sK, sV, sWQ, sWO, sWG, sWU, sWD, sOUT, sWS = 4, 8, 12, 16, 20, 24, 28, 32, 36, 40
    srd = lambda b: f"s[{b}:{b+3}]"
    sG, sC, sW, sN = 44, 45, 46, 47
    sT = [48, 49, 50, 51]
    sKV, sKV2 = 52, 53
    sA, sB, sCc, sD = 54, 55, 56, 57
    sCap = 58
    sB8 = 59
    sStampBase = 64
    nst = [0]
    def stamp():
        if stamps:
            i = nst[0]; nst[0] += 1
            a(f"s_memrealtime s[{sStampBase+2*i}:{sStampBase+2*i+1}]")
    def setexec(lo, hi):
        a(f"s_mov_b32 exec_lo, {lo:#x}\ns_mov_b32 exec_hi, {hi:#x}")
    def fullexec():
        a("s_mov_b64 exec, -1")

    a(f"""
    s_cmp_ge_u32 s2, 256
    s_cbranch_scc1 L_end
    s_load_dwordx2 s[{sX}:{sX+1}], s[0:1], 0
    s_load_dwordx2 s[{sWQ}:{sWQ+1}], s[0:1], 24
    s_load_dwordx2 s[{sK}:{sK+1}], s[0:1], 8
    s_load_dwordx2 s[{sV}:{sV+1}], s[0:1], 16
    s_load_dwordx2 s[{sWS}:{sWS+1}], s[0:1], 88
    """)
    stamp()
    vL, vG, vI, vMASK = V(), V(), V(), V()
    vKo = [V() for _ in range(4)]; vVo = [V() for _ in range(2)]; vWQo = V(); vT0 = V(); vT1 = V(); vT2 = V()
    a(f"""
    v_lshrrev_b32 v{vT0}, 6, v0
    v_and_b32 v{vL}, 63, v0
    v_readfirstlane_b32 s{sW}, v{vT0}
    s_and_b32 s{sG}, s2, 7
    s_lshr_b32 s{sC}, s2, 3
    v_lshrrev_b32 v{vG}, 4, v{vL}
    v_and_b32 v{vI}, 15, v{vL}
    v_mov_b32 v{vMASK}, {MASK:#x}
    """)
    for b, size in ((sX, 1024), (sWQ, 4 << 20), (sK, 1 << 27), (sV, 1 << 27), (sWS, WS_SIZE), (sWO, 4 << 20), (sOUT, 1024)):
        a(f"s_mov_b32 s{b+2}, {size:#x}\ns_mov_b32 s{b+3}, 0x20000")
    a(f"s_cmp_eq_u32 s{sG}, 7\ns_cselect_b32 s{sWG+2}, 0, {512*1792*2:#x}")
    a(f"s_mov_b32 s{sWU+2}, s{sWG+2}\ns_mov_b32 s{sWD+2}, s{sWG+2}")
    for b in (sWG, sWU, sWD): a(f"s_mov_b32 s{b+3}, 0x20000")
    a(f"""
    v_xor_b32 v{vT0}, v{vI}, v{vG}
    v_lshlrev_b32 v{vT0}, 4, v{vT0}
    v_lshl_add_u32 v{vKo[0]}, v{vG}, 8, v{vT0}
    v_xor_b32 v{vKo[1]}, 64, v{vKo[0]}
    v_xor_b32 v{vKo[2]}, 0x80, v{vKo[0]}
    v_xor_b32 v{vKo[3]}, 0xc0, v{vKo[0]}
    v_lshlrev_b32 v{vT1}, 1, v{vG}
    v_xor_b32 v{vT0}, v{vI}, v{vT1}
    v_lshlrev_b32 v{vT0}, 4, v{vT0}
    v_lshl_add_u32 v{vVo[0]}, v{vG}, 8, v{vT0}
    v_xor_b32 v{vVo[1]}, 0x80, v{vVo[0]}
    v_and_b32 v{vT0}, 7, v{vL}
    v_xor_b32 v{vT0}, v{vT0}, v{vT1}
    v_lshlrev_b32 v{vT0}, 4, v{vT0}
    v_lshrrev_b32 v{vT2}, 3, v{vL}
    v_lshl_add_u32 v{vWQo}, v{vT2}, 13, v{vT0}
    """)
    vGUo = V(); vXo = V()
    a(f"""
    v_mul_u32_u24 v{vGUo}, 3584, v{vT2}
    v_add_u32 v{vGUo}, v{vGUo}, v{vT0}
    v_lshlrev_b32 v{vXo}, 4, v{vL}
    """)
    a(f"""
    s_lshl_b32 s{sKV}, s{sG}, 24
    s_lshl_b32 s{sA}, s{sC}, 15
    s_add_u32 s{sKV}, s{sKV}, s{sA}
    s_lshl_b32 s{sA}, s{sW}, 13
    s_add_u32 s{sKV}, s{sKV}, s{sA}
    s_add_u32 s{sKV}, s{sKV}, 0xF00000
    s_add_u32 s{sKV2}, s{sKV}, 4096
    s_lshr_b32 s{sA}, s{sC}, 3
    s_lshl_b32 s{sB}, s{sA}, 20
    s_lshl_b32 s{sA}, s{sW}, 18
    s_add_u32 s{sB}, s{sB}, s{sA}
    s_lshl_b32 s{sA}, s{sG}, 10
    s_add_u32 s{sB}, s{sB}, s{sA}
    s_and_b32 s{sA}, s{sC}, 7
    s_lshl_b32 s{sA}, s{sA}, 7
    s_add_u32 s{sB}, s{sB}, s{sA}
    s_lshl_b32 s{sA}, s{sW}, 12
    s_add_u32 s{sA}, s{sA}, {L_WQ}
    s_mov_b32 m0, s{sA}
    s_lshl_b32 s{sB8}, s{sG}, 5
    s_add_u32 s{sB8}, s{sB8}, s{sC}
    s_waitcnt lgkmcnt(0)
    """)
    vA = V(16, 4); vB = V(16, 4)
    vXr = vB
    a(f"buffer_load_dwordx4 {vr(vXr,4)}, v{vXo}, {srd(sX)}, 0 offen")
    for m in range(4):
        a(f"buffer_load_dwordx4 v{vWQo}, {srd(sWQ)}, s{sB} offen offset:{m*1024} nt lds")
        if m < 3: a(f"s_add_u32 s{sB}, s{sB}, {65536-1024}")
    a(f"""
    s_load_dwordx2 s[{sWO}:{sWO+1}], s[0:1], 32
    s_load_dwordx2 s[{sWG}:{sWG+1}], s[0:1], 48
    s_load_dwordx2 s[{sWU}:{sWU+1}], s[0:1], 56
    s_load_dwordx2 s[{sWD}:{sWD+1}], s[0:1], 64
    s_load_dwordx2 s[{sOUT}:{sOUT+1}], s[0:1], 72
    s_load_dword s{sN}, s[{sWS}:{sWS+1}], {WS_NONCE}
    s_lshl_b32 s{sA}, s{sW}, 13
    s_mov_b32 m0, s{sA}
    """)
    for n in range(8):
        if n == 4: a("s_add_u32 m0, m0, 4096")
        a(f"buffer_load_dwordx4 v{vKo[n&3]}, {srd(sK)}, s{sKV if n<4 else sKV2} offen offset:{(n&3)*1024} nt lds")
    a(f"s_add_u32 s{sA}, s{sA}, {L_V}\ns_mov_b32 m0, s{sA}")
    for n in range(8):
        if n == 4: a("s_add_u32 m0, m0, 4096")
        a(f"buffer_load_dwordx4 v{vVo[n&1]}, {srd(sV)}, s{sKV if n<4 else sKV2} offen offset:{(n&3)*1024} nt lds")
    stamp()
    a(f"s_waitcnt lgkmcnt(0)")
    TA = [0x9B1, 0x3C5, 0x6A7, 0xD2B]; TB = [0x1F3, 0x8A5, 0x417, 0xC69]
    for i in range(4):
        a(f"s_mul_i32 s{sT[i]}, s{sN}, {TA[i]:#x}\ns_add_u32 s{sT[i]}, s{sT[i]}, {TB[i]:#x}\ns_and_b32 s{sT[i]}, s{sT[i]}, 0xfff")
    vE = vA; vD = vA + 8
    def wavesum(v, sdst):
        for mod in ("quad_perm:[1,0,3,2] row_mask:0xf", "quad_perm:[2,3,0,1] row_mask:0xf", "row_half_mirror row_mask:0xf",
                    "row_mirror row_mask:0xf", "row_bcast:15 row_mask:0xa", "row_bcast:31 row_mask:0xc"):
            a(f"v_add_f32_dpp v{v}, v{v}, v{v} {mod} bank_mask:0xf")
        a(f"v_readlane_b32 s{sdst}, v{v}, 63")
    a("s_waitcnt vmcnt(20)")
    stamp()
    for k in range(4):
        a(f"v_lshlrev_b32 v{vE+2*k}, 16, v{vXr+k}\nv_and_b32 v{vE+2*k+1}, 0xffff0000, v{vXr+k}")
    a(f"""
    v_add_f32 v{vT0}, v{vE}, v{vE+1}
    v_add_f32 v{vT1}, v{vE+2}, v{vE+3}
    v_add_f32 v{vT2}, v{vE+4}, v{vE+5}
    v_add_f32 v{vD}, v{vE+6}, v{vE+7}
    v_add_f32 v{vT0}, v{vT0}, v{vT1}
    v_add_f32 v{vT2}, v{vT2}, v{vD}
    v_add_f32 v{vT0}, v{vT0}, v{vT2}
    """)
    wavesum(vT0, sA)
    a(f"v_mov_b32 v{vT1}, s{sA}\nv_mul_f32 v{vT1}, {f2u(1/512):#x}, v{vT1}")
    for k in range(8): a(f"v_sub_f32 v{vD+k}, v{vE+k}, v{vT1}")
    a(f"v_mul_f32 v{vT0}, v{vD}, v{vD}")
    for k in range(1, 8): a(f"v_fmac_f32 v{vT0}, v{vD+k}, v{vD+k}")
    wavesum(vT0, sA)
    a(f"""
    v_mov_b32 v{vT2}, s{sA}
    v_mul_f32 v{vT2}, {f2u(1/512):#x}, v{vT2}
    v_cvt_pk_bf16_f32 v{vT0}, v{vT1}, v{vT2}
    v_lshlrev_b32 v{vT1}, 16, v{vT0}
    v_and_b32 v{vT2}, 0xffff0000, v{vT0}
    v_add_f32 v{vT2}, {f2u(1e-5):#x}, v{vT2}
    v_cvt_pk_bf16_f32 v{vT2}, v{vT2}, v{vT2}
    v_and_b32 v{vT2}, 0xffff0000, v{vT2}
    v_sqrt_f32 v{vT2}, v{vT2}
    v_cvt_pk_bf16_f32 v{vT2}, v{vT2}, v{vT2}
    v_and_b32 v{vT2}, 0xffff0000, v{vT2}
    v_rcp_f32 v{vT2}, v{vT2}
    """)
    for k in range(8): a(f"v_sub_f32 v{vD+k}, v{vE+k}, v{vT1}")
    for k in range(4): a(f"v_cvt_pk_bf16_f32 v{vE+k}, v{vD+2*k}, v{vD+2*k+1}")
    for k in range(4): a(f"v_lshlrev_b32 v{vD+2*k}, 16, v{vE+k}\nv_and_b32 v{vD+2*k+1}, 0xffff0000, v{vE+k}")
    for k in range(8): a(f"v_mul_f32 v{vD+k}, v{vD+k}, v{vT2}")
    for k in range(4): a(f"v_cvt_pk_bf16_f32 v{vE+k}, v{vD+2*k}, v{vD+2*k+1}")
    a(f"v_add_u32 v{vT0}, {L_XN}, v{vXo}\nds_write_b128 v{vT0}, {vr(vE,4)}")
    vTRa = V(); vXNa = V()
    a(f"""
    v_lshrrev_b32 v{vT0}, 2, v{vL}
    v_lshlrev_b32 v{vTRa}, 7, v{vT0}
    v_lshrrev_b32 v{vT1}, 1, v{vT0}
    v_and_b32 v{vT1}, 3, v{vT1}
    v_xor_b32 v{vT1}, s{sW}, v{vT1}
    v_lshl_add_u32 v{vTRa}, v{vT1}, 5, v{vTRa}
    v_and_b32 v{vT1}, 3, v{vL}
    v_lshl_add_u32 v{vTRa}, v{vT1}, 3, v{vTRa}
    s_lshr_b32 s{sA}, s{sC}, 3
    s_lshl_b32 s{sA}, s{sA}, 8
    s_add_u32 s{sA}, s{sA}, {L_XN}
    v_lshl_add_u32 v{vXNa}, v{vG}, 3, s{sA}
    """)
    vAcc = V(4, 4); vAcc2 = V(4, 4)
    a(f"s_waitcnt vmcnt(16) lgkmcnt(0)\ns_barrier")
    stamp()
    a(f"v_add_u32 v{vT0}, {L_WQ}, v{vTRa}")
    for kk in range(4):
        a(f"ds_read2_b64 {vr(vB+4*kk,4)}, v{vXNa} offset0:{8*kk} offset1:{8*kk+4}")
        for hh in range(2):
            a(f"ds_read_b64_tr_b16 {vr(vA+4*kk+2*hh,2)}, v{vT0} offset:{kk*4096+hh*2048}")
    for kk in range(4):
        a(f"s_waitcnt lgkmcnt({3*(3-kk)})")
        a(f"v_mfma_f32_16x16x32_bf16 {vr(vAcc,4)}, {vr(vA+4*kk,4)}, {vr(vB+4*kk,4)}, {'0' if kk==0 else vr(vAcc,4)}")
    vPub = V(4, 4)
    a(f"""
    s_lshl_b32 s{sA}, s{sG}, 13
    s_lshr_b32 s{sB}, s{sC}, 3
    s_lshl_b32 s{sB}, s{sB}, 11
    s_add_u32 s{sA}, s{sA}, s{sB}
    s_and_b32 s{sB}, s{sC}, 7
    s_lshl_b32 s{sB}, s{sB}, 8
    s_add_u32 s{sA}, s{sA}, s{sB}
    s_lshl_b32 s{sB}, s{sW}, 6
    s_add_u32 s{sA}, s{sA}, s{sB}
    s_add_u32 s{sA}, s{sA}, {WS_QS}
    v_lshlrev_b32 v{vT0}, 4, v{vG}
    """)
    for r in range(4): a(f"v_and_or_b32 v{vPub+r}, v{vAcc+r}, v{vMASK}, s{sT[r]}")
    setexec(0x00010001, 0x00010001)
    a(f"buffer_store_dwordx4 {vr(vPub,4)}, v{vT0}, {srd(sWS)}, s{sA} offen sc1")
    fullexec()
    stamp()
    vQg = V(); vGa = V(8, 4)
    a(f"""
    v_lshrrev_b32 v{vT0}, 5, v{vL}
    v_and_b32 v{vT1}, 31, v{vL}
    v_lshlrev_b32 v{vT1}, 4, v{vT1}
    v_lshl_add_u32 v{vQg}, v{vT0}, 12, v{vT1}
    s_lshl_b32 s{sD}, s{sG}, 13
    s_lshl_b32 s{sA}, s{sW}, 9
    s_add_u32 s{sD}, s{sD}, s{sA}
    s_add_u32 s{sD}, s{sD}, {WS_QS}
    """)
    if o["kwait"]:
        a("s_waitcnt vmcnt(9)")
    stamp()
    def qgather():
        a(f"buffer_load_dwordx4 {vr(vGa,4)}, v{vQg}, {srd(sWS)}, s{sD} offen sc1")
        a(f"buffer_load_dwordx4 {vr(vGa+4,4)}, v{vQg}, {srd(sWS)}, s{sD} offen offset:2048 sc1")
    qgather()
    a(f"""
    s_and_b32 s{sA}, s{sC}, 7
    s_lshl_b32 s{sA}, s{sA}, 3
    s_lshl_b32 s{sB}, s{sW}, 1
    s_add_u32 s{sA}, s{sA}, s{sB}
    s_mul_i32 s{sA}, s{sA}, {8*3584}
    s_lshr_b32 s{sB}, s{sB8}, 3
    s_lshl_b32 s{sB}, s{sB}, 7
    s_add_u32 s{sA}, s{sA}, s{sB}
    s_add_u32 s{sB}, s{sA}, {8*3584-1024}
    s_lshl_b32 s{sCc}, s{sW}, 11
    s_add_u32 s{sCc}, s{sCc}, {L_WG}
    s_mov_b32 m0, s{sCc}
    """)
    a(f"buffer_load_dwordx4 v{vGUo}, {srd(sWG)}, s{sA} offen nt lds")
    a(f"buffer_load_dwordx4 v{vGUo}, {srd(sWG)}, s{sB} offen offset:1024 nt lds")
    a(f"s_add_u32 m0, m0, {L_WU-L_WG}")
    a(f"buffer_load_dwordx4 v{vGUo}, {srd(sWU)}, s{sA} offen nt lds")
    a(f"buffer_load_dwordx4 v{vGUo}, {srd(sWU)}, s{sB} offen offset:1024 nt lds")
    vW = V(24, 4); vWo = V()
    a(f"""
    v_lshlrev_b32 v{vWo}, 10, v{vG}
    v_lshl_add_u32 v{vWo}, v{vI}, 4, v{vWo}
    s_lshl_b32 s{sA}, s{sW}, 8
    v_add_u32 v{vWo}, s{sA}, v{vWo}
    s_lshl_b32 s{sA}, s{sB8}, 14
    s_lshl_b32 s{sB}, s{sB8}, 13
    """)
    for n in range(4):
        a(f"buffer_load_dwordx4 {vr(vW+4*n,4)}, v{vWo}, {srd(sWO)}, s{sA} offen nt")
        if n < 3: a(f"s_add_u32 s{sA}, s{sA}, 4096")
    for n in range(2):
        a(f"buffer_load_dwordx4 {vr(vW+16+4*n,4)}, v{vWo}, {srd(sWD)}, s{sB} offen nt")
        if n < 1: a(f"s_add_u32 s{sB}, s{sB}, 4096")
    stamp()
    vKf = V(32, 4); vKa = V(4)
    a(f"""
    v_xor_b32 v{vT0}, v{vG}, v{vI}
    v_lshlrev_b32 v{vT0}, 4, v{vT0}
    v_lshl_add_u32 v{vKa}, v{vI}, 8, v{vT0}
    s_lshl_b32 s{sA}, s{sW}, 13
    v_add_u32 v{vKa}, s{sA}, v{vKa}
    """)
    for t in range(1, 4): a(f"v_xor_b32 v{vKa+t}, {t<<6:#x}, v{vKa}")
    if not o["kwait"]:
        a("s_waitcnt vmcnt(21)")
    for T in range(2):
        for t in range(4):
            a(f"ds_read_b128 {vr(vKf+16*T+4*t,4)}, v{vKa+t} offset:{T*4096}")
    a(f"s_mov_b32 s{sCap}, {cap}")
    a("s_waitcnt vmcnt(10)")
    a("L_qchk:")
    for e in range(8): a(f"v_xor_b32 v{vGa+e}, s{sT[e&3]}, v{vGa+e}")
    a(f"""
    v_or3_b32 v{vT0}, v{vGa}, v{vGa+1}, v{vGa+2}
    v_or3_b32 v{vT1}, v{vGa+3}, v{vGa+4}, v{vGa+5}
    v_or3_b32 v{vT0}, v{vT0}, v{vGa+6}, v{vGa+7}
    v_or_b32 v{vT0}, v{vT0}, v{vT1}
    v_and_b32 v{vT0}, 0xfff, v{vT0}
    v_cmp_ne_u32 vcc, 0, v{vT0}
    s_cbranch_vccz L_qok
    s_sub_u32 s{sCap}, s{sCap}, 1
    s_cbranch_scc1 L_qok
    """)
    qgather()
    a("s_waitcnt vmcnt(0)\ns_branch L_qchk\nL_qok:")
    stamp()
    a(f"""
    v_add_f32 v{vGa}, v{vGa}, v{vGa+4}
    v_add_f32 v{vGa+1}, v{vGa+1}, v{vGa+5}
    v_add_f32 v{vGa+2}, v{vGa+2}, v{vGa+6}
    v_add_f32 v{vGa+3}, v{vGa+3}, v{vGa+7}
    v_permlane32_swap_b32 v{vGa}, v{vGa+2}
    v_permlane32_swap_b32 v{vGa+1}, v{vGa+3}
    v_add_f32 v{vGa}, v{vGa}, v{vGa+2}
    v_add_f32 v{vGa+1}, v{vGa+1}, v{vGa+3}
    v_cvt_pk_bf16_f32 v{vGa}, v{vGa}, v{vGa+1}
    v_and_b32 v{vT0}, 31, v{vL}
    v_lshlrev_b32 v{vT0}, 3, v{vT0}
    v_lshrrev_b32 v{vT1}, 5, v{vL}
    v_lshl_add_u32 v{vT0}, v{vT1}, 2, v{vT0}
    s_mul_i32 s{sA}, s{sW}, 320
    s_add_u32 s{sA}, s{sA}, {L_Q}
    v_add_u32 v{vT0}, s{sA}, v{vT0}
    ds_write_b32 v{vT0}, v{vGa}
    v_and_b32 v{vT0}, 3, v{vI}
    v_mul_u32_u24 v{vT0}, 320, v{vT0}
    v_lshl_add_u32 v{vT0}, v{vG}, 4, v{vT0}
    v_add_u32 v{vT0}, {L_Q}, v{vT0}
    s_waitcnt lgkmcnt(0)
    s_barrier
    """)
    vQf = vB
    for t in range(4): a(f"ds_read_b128 {vr(vQf+4*t,4)}, v{vT0} offset:{t*64}")
    vVa = V(8); vVf = V(32, 4)
    a(f"""
    v_lshrrev_b32 v{vT1}, 2, v{vL}
    v_lshlrev_b32 v{vVa}, 8, v{vT1}
    v_and_b32 v{vT1}, 7, v{vT1}
    v_lshl_add_u32 v{vVa}, v{vT1}, 5, v{vVa}
    v_and_b32 v{vT1}, 3, v{vL}
    v_lshl_add_u32 v{vVa}, v{vT1}, 3, v{vVa}
    s_lshl_b32 s{sA}, s{sW}, 13
    s_add_u32 s{sA}, s{sA}, {L_V}
    v_add_u32 v{vVa}, s{sA}, v{vVa}
    """)
    for t in range(1, 8): a(f"v_xor_b32 v{vVa+t}, {t<<5:#x}, v{vVa}")
    vS = V(8, 4)
    for t in range(4):
        a(f"s_waitcnt lgkmcnt({3-t})")
        for T in range(2):
            a(f"v_mfma_f32_16x16x32_bf16 {vr(vS+4*T,4)}, {vr(vKf+16*T+4*t,4)}, {vr(vQf+4*t,4)}, {'0' if t==0 else vr(vS+4*T,4)}")
    for t in range(8):
        for hh in range(2):
            a(f"ds_read_b64_tr_b16 {vr(vVf+4*t+2*hh,2)}, v{vVa+t} offset:{hh*4096}")
    vM = V(); vM2 = V()
    a(f"""
    v_max3_f32 v{vM}, v{vS}, v{vS+1}, v{vS+2}
    v_max3_f32 v{vM2}, v{vS+3}, v{vS+4}, v{vS+5}
    v_max3_f32 v{vM}, v{vM}, v{vS+6}, v{vS+7}
    v_max_f32 v{vM}, v{vM}, v{vM2}
    v_mov_b32 v{vM2}, v{vM}
    v_permlane16_swap_b32 v{vM}, v{vM2}
    v_max_f32 v{vM}, v{vM}, v{vM2}
    v_mov_b32 v{vM2}, v{vM}
    v_permlane32_swap_b32 v{vM}, v{vM2}
    v_max_f32 v{vM}, v{vM}, v{vM2}
    s_mov_b32 s{sA}, {f2u(SC):#x}
    v_mul_f32 v{vM}, s{sA}, v{vM}
    """)
    for e in range(8): a(f"v_fma_f32 v{vS+e}, v{vS+e}, s{sA}, -v{vM}")
    for e in range(8): a(f"v_exp_f32 v{vS+e}, v{vS+e}")
    vP = V(4, 4); vOne = V(4, 4)
    for k in range(4): a(f"v_cvt_pk_bf16_f32 v{vP+k}, v{vS+2*k}, v{vS+2*k+1}")
    for k in range(4): a(f"v_mov_b32 v{vOne+k}, 0x3f803f80")
    vO = vKf; vLs = V(4, 4)
    a(f"v_mfma_f32_16x16x32_bf16 {vr(vLs,4)}, {vr(vOne,4)}, {vr(vP,4)}, 0")
    for t in range(8):
        a(f"s_waitcnt lgkmcnt({2*(7-t)})") if 2*(7-t) <= 15 else None
        a(f"v_mfma_f32_16x16x32_bf16 {vr(vO+4*t,4)}, {vr(vVf+4*t,4)}, {vr(vP,4)}, 0")
    a(f"""
    v_and_b32 v{vT0}, 3, v{vI}
    v_mul_u32_u24 v{vT0}, {OP_H}, v{vT0}
    v_lshl_add_u32 v{vT0}, v{vG}, 4, v{vT0}
    s_mul_i32 s{sA}, s{sW}, {OP_W}
    s_add_u32 s{sA}, s{sA}, {L_OP}
    v_add_u32 v{vT0}, s{sA}, v{vT0}
    v_and_b32 v{vT1}, 3, v{vI}
    v_lshlrev_b32 v{vT1}, 5, v{vT1}
    s_lshl_b32 s{sA}, s{sW}, 3
    s_add_u32 s{sA}, s{sA}, {L_ST}
    v_add_u32 v{vT1}, s{sA}, v{vT1}
    v_mov_b32 v{vM2}, v{vLs}
    """)
    setexec(0x000F000F, 0x000F000F)
    for t in range(8): a(f"ds_write_b128 v{vT0}, {vr(vO+4*t,4)} offset:{t*64}")
    setexec(0x0000000F, 0)
    assert vM2 == vM + 1
    a(f"ds_write_b64 v{vT1}, v[{vM}:{vM2}]") if vM % 2 == 0 else a(f"ds_write_b32 v{vT1}, v{vM}\nds_write_b32 v{vT1}, v{vM2} offset:4")
    fullexec()
    a("s_waitcnt lgkmcnt(0)\ns_barrier")
    stamp()
    a(f"s_cmp_ge_u32 s{sW}, 2\ns_cbranch_scc1 L_nocomb")
    vC = vVf; vSt = vVf + 16; vF = vVf + 24
    a(f"""
    v_and_b32 v{vT0}, 31, v{vL}
    v_lshlrev_b32 v{vT0}, 4, v{vT0}
    v_lshrrev_b32 v{vT1}, 5, v{vL}
    s_lshl_b32 s{sA}, s{sW}, 1
    v_add_u32 v{vT1}, s{sA}, v{vT1}
    v_mul_u32_u24 v{vT2}, {OP_H}, v{vT1}
    v_add_u32 v{vT0}, v{vT0}, v{vT2}
    v_add_u32 v{vT0}, {L_OP}, v{vT0}
    v_lshlrev_b32 v{vT1}, 5, v{vT1}
    v_add_u32 v{vT1}, {L_ST}, v{vT1}
    ds_read_b128 {vr(vSt,4)}, v{vT1}
    ds_read_b128 {vr(vSt+4,4)}, v{vT1} offset:16
    """)
    for w in range(4): a(f"ds_read_b128 {vr(vC+4*w,4)}, v{vT0} offset:{w*OP_W}")
    a(f"""
    s_waitcnt lgkmcnt(4)
    v_max3_f32 v{vT2}, v{vSt}, v{vSt+2}, v{vSt+4}
    v_max_f32 v{vT2}, v{vT2}, v{vSt+6}
    v_and_b32 v{vT2}, v{vMASK}, v{vT2}
    """)
    for w in range(4): a(f"v_sub_f32 v{vF+w}, v{vSt+2*w}, v{vT2}")
    for w in range(4): a(f"v_exp_f32 v{vF+w}, v{vF+w}")
    a(f"v_mul_f32 v{vT1}, v{vF}, v{vSt+1}")
    for w in range(1, 4): a(f"v_fmac_f32 v{vT1}, v{vF+w}, v{vSt+2*w+1}")
    a("s_waitcnt lgkmcnt(0)")
    for e in range(4): a(f"v_mul_f32 v{vPub+e}, v{vF}, v{vC+e}")
    for w in range(1, 4):
        for e in range(4): a(f"v_fmac_f32 v{vPub+e}, v{vF+w}, v{vC+4*w+e}")
    for e in range(4): a(f"v_and_or_b32 v{vPub+e}, v{vPub+e}, v{vMASK}, s{sT[e]}")
    vPub2 = vVf + 28
    a(f"""
    v_lshlrev_b32 v{vT0}, 4, v{vL}
    s_lshl_b32 s{sA}, s{sB8}, 11
    s_lshl_b32 s{sB}, s{sW}, 10
    s_add_u32 s{sA}, s{sA}, s{sB}
    s_add_u32 s{sA}, s{sA}, {WS_OPD}
    buffer_store_dwordx4 {vr(vPub,4)}, v{vT0}, {srd(sWS)}, s{sA} offen sc1
    v_or_b32 v{vPub2}, s{sT[0]}, v{vT2}
    v_and_or_b32 v{vPub2+1}, v{vT1}, v{vMASK}, s{sT[1]}
    v_mov_b32 v{vPub2+2}, s{sT[2]}
    v_mov_b32 v{vPub2+3}, s{sT[3]}
    v_lshrrev_b32 v{vT0}, 5, v{vL}
    v_lshlrev_b32 v{vT0}, 4, v{vT0}
    s_lshl_b32 s{sA}, s{sB8}, 6
    s_lshl_b32 s{sB}, s{sW}, 5
    s_add_u32 s{sA}, s{sA}, s{sB}
    s_add_u32 s{sA}, s{sA}, {WS_OPS}
    """)
    setexec(0x1, 0x1)
    a(f"buffer_store_dwordx4 {vr(vPub2,4)}, v{vT0}, {srd(sWS)}, s{sA} offen sc1")
    fullexec()
    a("s_waitcnt vmcnt(8)\ns_branch L_comb_done\nL_nocomb:\ns_waitcnt vmcnt(6)\nL_comb_done:\ns_barrier")
    stamp()
    a(f"""
    s_and_b32 s{sA}, s{sC}, 7
    s_lshl_b32 s{sA}, s{sA}, 7
    s_add_u32 s{sA}, s{sA}, {L_XN}
    v_lshl_add_u32 v{vXNa}, v{vG}, 3, s{sA}
    v_add_u32 v{vT0}, {L_WG}, v{vTRa}
    """)
    for kk in range(2):
        a(f"ds_read2_b64 {vr(vB+4*kk,4)}, v{vXNa} offset0:{8*kk} offset1:{8*kk+4}")
        for hh in range(2):
            a(f"ds_read_b64_tr_b16 {vr(vA+4*kk+2*hh,2)}, v{vT0} offset:{kk*4096+hh*2048}")
        for hh in range(2):
            a(f"ds_read_b64_tr_b16 {vr(vA+8+4*kk+2*hh,2)}, v{vT0} offset:{8192+kk*4096+hh*2048}")
    for kk in range(2):
        a(f"s_waitcnt lgkmcnt({5*(1-kk)})")
        a(f"v_mfma_f32_16x16x32_bf16 {vr(vAcc,4)}, {vr(vA+4*kk,4)}, {vr(vB+4*kk,4)}, {'0' if kk==0 else vr(vAcc,4)}")
        a(f"v_mfma_f32_16x16x32_bf16 {vr(vAcc2,4)}, {vr(vA+8+4*kk,4)}, {vr(vB+4*kk,4)}, {'0' if kk==0 else vr(vAcc2,4)}")
    a(f"""
    v_cmp_eq_u32 vcc, 1, v{vI}
    v_lshlrev_b32 v{vT0}, 5, v{vG}
    v_lshl_add_u32 v{vT0}, v{vI}, 4, v{vT0}
    s_lshl_b32 s{sA}, s{sB8}, 9
    s_lshl_b32 s{sB}, s{sW}, 7
    s_add_u32 s{sA}, s{sA}, s{sB}
    s_add_u32 s{sA}, s{sA}, {WS_GUS}
    v_cndmask_b32 v{vPub}, v{vAcc}, v{vAcc+2}, vcc
    v_cndmask_b32 v{vPub+1}, v{vAcc+1}, v{vAcc+3}, vcc
    v_cndmask_b32 v{vPub+2}, v{vAcc2}, v{vAcc2+2}, vcc
    v_cndmask_b32 v{vPub+3}, v{vAcc2+1}, v{vAcc2+3}, vcc
    """)
    for e in range(4): a(f"v_and_or_b32 v{vPub+e}, v{vPub+e}, v{vMASK}, s{sT[e]}")
    setexec(0x00030003, 0x00030003)
    a(f"buffer_store_dwordx4 {vr(vPub,4)}, v{vT0}, {srd(sWS)}, s{sA} offen sc1")
    fullexec()
    stamp()
    a(f"s_mov_b32 s{sCap}, {cap}")
    a(f"s_cmp_eq_u32 s{sW}, 1\ns_cbranch_scc1 L_bgather\ns_cmp_eq_u32 s{sW}, 0\ns_cbranch_scc0 L_vecdone")
    vH = vKf; vHa = V(); vHs = V()
    a(f"""
    v_lshrrev_b32 v{vT0}, 1, v{vL}
    v_and_b32 v{vT1}, 1, v{vL}
    v_lshlrev_b32 v{vHa}, 11, v{vT0}
    v_lshl_add_u32 v{vHa}, v{vT1}, 5, v{vHa}
    v_lshlrev_b32 v{vHs}, 6, v{vT0}
    s_lshl_b32 s{sA}, s{sG}, 16
    s_lshr_b32 s{sB}, s{sC}, 3
    s_lshl_b32 s{sCc}, s{sB}, 9
    s_add_u32 s{sA}, s{sA}, s{sCc}
    s_and_b32 s{sCc}, s{sC}, 7
    s_lshl_b32 s{sCc}, s{sCc}, 6
    s_add_u32 s{sA}, s{sA}, s{sCc}
    s_add_u32 s{sA}, s{sA}, {WS_OPD}
    s_lshl_b32 s{sCc}, s{sG}, 11
    s_lshl_b32 s{sB}, s{sB}, 4
    s_add_u32 s{sB}, s{sB}, s{sCc}
    s_add_u32 s{sB}, s{sB}, {WS_OPS}
    L_hpoll:
    buffer_load_dwordx4 {vr(vH+8,4)}, v{vHs}, {srd(sWS)}, s{sB} offen sc1
    buffer_load_dwordx4 {vr(vH,4)}, v{vHa}, {srd(sWS)}, s{sA} offen sc1
    buffer_load_dwordx4 {vr(vH+4,4)}, v{vHa}, {srd(sWS)}, s{sA} offen offset:16 sc1
    s_waitcnt vmcnt(0)
    """)
    for e in range(12): a(f"v_xor_b32 v{vH+e}, s{sT[e&3]}, v{vH+e}")
    a(f"""
    v_or3_b32 v{vT0}, v{vH}, v{vH+1}, v{vH+2}
    v_or3_b32 v{vT1}, v{vH+3}, v{vH+4}, v{vH+5}
    v_or3_b32 v{vT2}, v{vH+6}, v{vH+7}, v{vH+8}
    v_or3_b32 v{vT0}, v{vT0}, v{vH+9}, v{vH+10}
    v_or3_b32 v{vT1}, v{vT1}, v{vT2}, v{vH+11}
    v_or_b32 v{vT0}, v{vT0}, v{vT1}
    v_and_b32 v{vT0}, 0xfff, v{vT0}
    v_cmp_ne_u32 vcc, 0, v{vT0}
    s_cbranch_vccz L_hok
    s_sub_u32 s{sCap}, s{sCap}, 1
    s_cbranch_scc0 L_hpoll
    L_hok:
    """)
    stamp_h = None
    m, l = vH + 8, vH + 9
    a(f"""
    v_max_f32_dpp v{vT0}, v{m}, v{m} row_ror:2 row_mask:0xf bank_mask:0xf
    v_max_f32_dpp v{vT0}, v{vT0}, v{vT0} row_ror:4 row_mask:0xf bank_mask:0xf
    v_max_f32_dpp v{vT0}, v{vT0}, v{vT0} row_ror:8 row_mask:0xf bank_mask:0xf
    v_mov_b32 v{vT1}, v{vT0}
    v_permlane16_swap_b32 v{vT0}, v{vT1}
    v_max_f32 v{vT0}, v{vT0}, v{vT1}
    v_mov_b32 v{vT1}, v{vT0}
    v_permlane32_swap_b32 v{vT0}, v{vT1}
    v_max_f32 v{vT0}, v{vT0}, v{vT1}
    v_sub_f32 v{vT0}, v{m}, v{vT0}
    v_exp_f32 v{vT0}, v{vT0}
    """)
    for e in range(8): a(f"v_mul_f32 v{vH+e}, v{vT0}, v{vH+e}")
    a(f"v_mul_f32 v{l}, v{vT0}, v{l}")
    for e in range(4): a(f"v_permlane32_swap_b32 v{vH+e}, v{vH+4+e}")
    a(f"v_mov_b32 v{vT1}, v{l}")
    for e in range(4): a(f"v_add_f32 v{vH+e}, v{vH+e}, v{vH+4+e}")
    a(f"""
    v_permlane32_swap_b32 v{l}, v{vT1}
    v_permlane16_swap_b32 v{vH}, v{vH+2}
    v_permlane16_swap_b32 v{vH+1}, v{vH+3}
    v_add_f32 v{l}, v{l}, v{vT1}
    v_add_f32 v{vH}, v{vH}, v{vH+2}
    v_add_f32 v{vH+1}, v{vH+1}, v{vH+3}
    v_mov_b32 v{vT1}, v{l}
    v_permlane16_swap_b32 v{l}, v{vT1}
    v_add_f32 v{l}, v{l}, v{vT1}
    """)
    for rot in (8, 4, 2):
        for x in (vH, vH + 1, l):
            a(f"v_add_f32_dpp v{x}, v{x}, v{x} row_ror:{rot} row_mask:0xf bank_mask:0xf")
    a(f"""
    v_rcp_f32 v{l}, v{l}
    v_and_b32 v{vT0}, 1, v{vG}
    v_lshlrev_b32 v{vT0}, 6, v{vT0}
    v_lshrrev_b32 v{vT1}, 1, v{vG}
    v_lshl_add_u32 v{vT0}, v{vT1}, 2, v{vT0}
    v_and_b32 v{vT1}, 1, v{vL}
    v_lshl_add_u32 v{vT0}, v{vT1}, 3, v{vT0}
    v_add_u32 v{vT0}, {L_VEC}, v{vT0}
    v_mul_f32 v{vH}, v{vH}, v{l}
    v_mul_f32 v{vH+1}, v{vH+1}, v{l}
    v_cvt_pk_bf16_f32 v{vH}, v{vH}, v{vH}
    v_cvt_pk_bf16_f32 v{vH+1}, v{vH+1}, v{vH+1}
    """)
    setexec(0x00030003, 0x00030003)
    a(f"ds_write_b32 v{vT0}, v{vH}\nds_write_b32 v{vT0}, v{vH+1} offset:32")
    fullexec()
    a("s_branch L_vecdone")
    a(f"""
    L_bgather:
    v_and_b32 v{vT0}, 7, v{vL}
    v_lshlrev_b32 v{vHa}, 9, v{vT0}
    v_lshrrev_b32 v{vT1}, 3, v{vL}
    v_and_b32 v{vT1}, 3, v{vT1}
    v_lshl_add_u32 v{vHa}, v{vT1}, 4, v{vHa}
    s_and_b32 s{sA}, s{sB8}, 0xf8
    s_lshl_b32 s{sA}, s{sA}, 9
    s_and_b32 s{sB}, s{sC}, 7
    s_lshl_b32 s{sB}, s{sB}, 6
    s_add_u32 s{sA}, s{sA}, s{sB}
    s_add_u32 s{sA}, s{sA}, {WS_GUS}
    L_bpoll:
    buffer_load_dwordx4 {vr(vH,4)}, v{vHa}, {srd(sWS)}, s{sA} offen sc1
    s_waitcnt vmcnt(0)
    """)
    for e in range(4): a(f"v_xor_b32 v{vH+e}, s{sT[e]}, v{vH+e}")
    a(f"""
    v_or3_b32 v{vT0}, v{vH}, v{vH+1}, v{vH+2}
    v_or_b32 v{vT0}, v{vT0}, v{vH+3}
    v_and_b32 v{vT0}, 0xfff, v{vT0}
    v_cmp_ne_u32 vcc, 0, v{vT0}
    s_cbranch_vccz L_bok
    s_sub_u32 s{sCap}, s{sCap}, 1
    s_cbranch_scc0 L_bpoll
    L_bok:
    """)
    for mod in ("quad_perm:[1,0,3,2]", "quad_perm:[2,3,0,1]", "row_half_mirror"):
        for e in range(4):
            a(f"v_add_f32_dpp v{vH+e}, v{vH+e}, v{vH+e} {mod} row_mask:0xf bank_mask:0xf")
    a(f"""
    v_cvt_pk_bf16_f32 v{vH+4}, v{vH}, v{vH+1}
    v_cvt_pk_bf16_f32 v{vH+5}, v{vH+2}, v{vH+3}
    v_lshlrev_b32 v{vH}, 16, v{vH+4}
    v_and_b32 v{vH+1}, 0xffff0000, v{vH+4}
    v_lshlrev_b32 v{vH+2}, 16, v{vH+5}
    v_and_b32 v{vH+3}, 0xffff0000, v{vH+5}
    v_mul_f32 v{vH}, v{vH}, v{vH+2}
    v_mul_f32 v{vH+1}, v{vH+1}, v{vH+3}
    v_cvt_pk_bf16_f32 v{vH}, v{vH}, v{vH}
    v_cvt_pk_bf16_f32 v{vH+1}, v{vH+1}, v{vH+1}
    v_lshrrev_b32 v{vT1}, 3, v{vL}
    v_and_b32 v{vT0}, 1, v{vT1}
    v_lshlrev_b32 v{vT0}, 6, v{vT0}
    v_lshrrev_b32 v{vT1}, 1, v{vT1}
    v_and_b32 v{vT1}, 1, v{vT1}
    v_lshl_add_u32 v{vT0}, v{vT1}, 2, v{vT0}
    v_add_u32 v{vT0}, {L_VEC+16}, v{vT0}
    """)
    setexec(0x01010101, 0)
    a(f"ds_write_b32 v{vT0}, v{vH}\nds_write_b32 v{vT0}, v{vH+1} offset:32")
    fullexec()
    a("L_vecdone:")
    vMk = vVf; vVV = vVf + 4; vAd = vVf + 12
    a(f"""
    v_and_b32 v{vT0}, 1, v{vI}
    v_cmp_eq_u32 vcc, 1, v{vT0}
    v_mov_b32 v{vT1}, 0xffff
    v_mov_b32 v{vT2}, 0xffff0000
    v_cndmask_b32 v{vT1}, v{vT1}, v{vT2}, vcc
    v_lshrrev_b32 v{vT0}, 1, v{vI}
    """)
    for q in range(4):
        a(f"v_cmp_eq_u32 vcc, {q}, v{vT0}\nv_cndmask_b32 v{vMk+q}, 0, v{vT1}, vcc")
    a(f"""
    v_lshlrev_b32 v{vT0}, 5, v{vG}
    v_add_u32 v{vT0}, {L_VEC}, v{vT0}
    s_waitcnt vmcnt(0) lgkmcnt(0)
    s_barrier
    """)
    stamp()
    a(f"ds_read_b128 {vr(vVV,4)}, v{vT0}\nds_read_b64 {vr(vVV+4,2)}, v{vT0} offset:16")
    for n in range(6):
        if n == 0: a("s_waitcnt lgkmcnt(1)")
        if n == 4: a("s_waitcnt lgkmcnt(0)")
        d = vAd + 4 * (n & 1)
        for q in range(4): a(f"v_and_b32 v{d+q}, v{vVV+n}, v{vMk+q}")
        a(f"v_mfma_f32_16x16x32_bf16 {vr(vAcc,4)}, {vr(d,4)}, {vr(vW+4*n,4)}, {'0' if n==0 else vr(vAcc,4)}")
    a(f"""
    v_lshlrev_b32 v{vT0}, 5, v{vI}
    v_lshl_add_u32 v{vT0}, v{vG}, 4, v{vT0}
    s_lshl_b32 s{sA}, s2, 11
    s_lshl_b32 s{sB}, s{sW}, 9
    s_add_u32 s{sA}, s{sA}, s{sB}
    s_add_u32 s{sA}, s{sA}, {WS_FIN}
    """)
    for e in range(4): a(f"v_and_or_b32 v{vPub+e}, v{vAcc+e}, v{vMASK}, s{sT[e]}")
    setexec(0xffffffff, 0)
    a(f"buffer_store_dwordx4 {vr(vPub,4)}, v{vT0}, {srd(sWS)}, s{sA} offen sc1")
    fullexec()
    stamp()
    a(f"""
    s_cmp_lg_u32 s{sW}, 0
    s_cbranch_scc1 L_fin
    s_cmp_ge_u32 s{sC}, 16
    s_cbranch_scc1 L_fin
    s_lshl_b32 s{sCc}, s{sG}, 4
    s_add_u32 s{sCc}, s{sCc}, s{sC}
    s_lshl_b32 s{sA}, s{sCc}, 4
    s_add_u32 s{sA}, s{sA}, {WS_FIN}
    s_add_u32 s{sB}, s{sA}, 0x20000
    s_add_u32 s{sD}, s{sB}, 0x20000
    s_add_u32 s{sKV}, s{sD}, 0x20000
    v_lshlrev_b32 v{vHa}, 11, v{vL}
    s_lshl_b32 s{sCc}, s{sCc}, 3
    v_lshl_add_u32 v{vHs}, v{vG}, 1, s{sCc}
    buffer_load_ushort v{vT2}, v{vHs}, {srd(sX)}, 0 offen
    s_mov_b32 s{sCap}, {cap}
    L_fpoll:
    """)
    vFn = vKf + 16
    for n, s in enumerate((sA, sB, sD, sKV)):
        a(f"buffer_load_dwordx4 {vr(vFn+4*n,4)}, v{vHa}, {srd(sWS)}, s{s} offen sc1")
    a("s_waitcnt vmcnt(0)")
    for e in range(16): a(f"v_xor_b32 v{vFn+e}, s{sT[e&3]}, v{vFn+e}")
    a(f"v_or3_b32 v{vT0}, v{vFn}, v{vFn+1}, v{vFn+2}\nv_or3_b32 v{vT1}, v{vFn+3}, v{vFn+4}, v{vFn+5}")
    for k in range(6, 16, 4):
        a(f"v_or3_b32 v{vT0}, v{vT0}, v{vFn+k}, v{vFn+k+1}")
        if k + 3 < 16: a(f"v_or3_b32 v{vT1}, v{vT1}, v{vFn+k+2}, v{vFn+k+3}")
    a(f"""
    v_or_b32 v{vT0}, v{vT0}, v{vT1}
    v_and_b32 v{vT0}, 0xfff, v{vT0}
    v_cmp_ne_u32 vcc, 0, v{vT0}
    s_cbranch_vccz L_fok
    s_sub_u32 s{sCap}, s{sCap}, 1
    s_cbranch_scc0 L_fpoll
    L_fok:
    """)
    for e in range(4):
        a(f"v_add_f32 v{vFn+e}, v{vFn+e}, v{vFn+4+e}\nv_add_f32 v{vFn+8+e}, v{vFn+8+e}, v{vFn+12+e}")
    for e in range(4): a(f"v_add_f32 v{vFn+e}, v{vFn+e}, v{vFn+8+e}")
    a(f"""
    v_permlane32_swap_b32 v{vFn}, v{vFn+2}
    v_permlane32_swap_b32 v{vFn+1}, v{vFn+3}
    v_add_f32 v{vFn}, v{vFn}, v{vFn+2}
    v_add_f32 v{vFn+1}, v{vFn+1}, v{vFn+3}
    v_permlane16_swap_b32 v{vFn}, v{vFn+1}
    v_add_f32 v{vFn}, v{vFn}, v{vFn+1}
    """)
    for rot in (8, 4, 2, 1):
        a(f"v_add_f32_dpp v{vFn}, v{vFn}, v{vFn} row_ror:{rot} row_mask:0xf bank_mask:0xf")
    a(f"""
    v_lshlrev_b32 v{vT2}, 16, v{vT2}
    v_add_f32 v{vFn}, v{vFn}, v{vT2}
    v_cvt_pk_bf16_f32 v{vFn}, v{vFn}, v{vFn}
    """)
    setexec(0x00010001, 0x00010001)
    a(f"buffer_store_short v{vFn}, v{vHs}, {srd(sOUT)}, 0 offen")
    fullexec()
    a(f"""
    s_cmp_lg_u32 s2, 0
    s_cbranch_scc1 L_fin
    s_add_u32 s{sA}, s{sN}, 1
    v_mov_b32 v{vT0}, s{sA}
    v_mov_b32 v{vT1}, {WS_NONCE}
    """)
    setexec(1, 0)
    a(f"buffer_store_dword v{vT0}, v{vT1}, {srd(sWS)}, 0 offen sc1")
    fullexec()
    a("L_fin:")
    stamp()
    if stamps:
        a(f"s_waitcnt lgkmcnt(0)\nv_mov_b32 v{vT0}, 0")
        for i in range(nst[0]):
            a(f"v_writelane_b32 v{vT0}, s{sStampBase+2*i}, {i}")
        a(f"""
        s_lshl_b32 s{sA}, s2, 10
        s_lshl_b32 s{sB}, s{sW}, 8
        s_add_u32 s{sA}, s{sA}, s{sB}
        s_add_u32 s{sA}, s{sA}, {WS_DBG}
        v_lshlrev_b32 v{vT1}, 2, v{vL}
        buffer_store_dword v{vT0}, v{vT1}, {srd(sWS)}, s{sA} offen
        """)
    a("L_end:\ns_endpgm")
    nv = V.n
    body = a.text()
    txt = HEADER + f"; @launch grid=(256,1,1) block=(256,1,1) lds={LDS_SIZE}\n"
    txt += '.amdgcn_target "amdgcn-amd-amdhsa--gfx950"\n.text\n'
    txt += f".globl {KNAME}\n.p2align 8\n.type {KNAME},@function\n{KNAME}:\n" + body
    nvr = (nv + 7) // 8 * 8
    txt += f""".section .rodata,"a"
.p2align 6
.amdhsa_kernel {KNAME}
  .amdhsa_next_free_vgpr {nvr}
  .amdhsa_next_free_sgpr 102
  .amdhsa_accum_offset {nvr}
  .amdhsa_group_segment_fixed_size 0
  .amdhsa_kernarg_size 96
  .amdhsa_user_sgpr_count 2
  .amdhsa_user_sgpr_kernarg_segment_ptr 1
  .amdhsa_system_sgpr_workgroup_id_x 1
.end_amdhsa_kernel
"""
    return txt, nst[0], nv

if __name__ == "__main__":
    t, n, nv = gen(stamps=False)
    open("k1.s", "w").write(t)
    t2, n, nv = gen(stamps=True, cap=20000)
    open("k1_st.s", "w").write(t2)
    print("stamps", n, "vgprs", nv, "lds", LDS_SIZE)
```

```python
import sys
from asmlib import Asm

KNAME = "parallel_sum__sliding_block_cached__glu_gated_bilinear__decode_kernel"
HEADER = """; Fused decode block: out = x + Attn(LN(x)) + BilinearGLU(LN(x)); one launch, 256 workgroups x 256 threads.
"""
WS_NONCE = 0
WS_QS  = 0x10000
WS_GUS = 0x20000
WS_OPS = 0x40000
WS_OPD = 0x80000
WS_FIN = 0x100000
WS_DBG = 0x200000
WS_SIZE = 0x400000
L_K, L_V, L_WQ, L_WG, L_WU = 0, 32768, 65536, 81920, 90112
L_XN = 98304
L_Q = L_XN + 1024
L_OP = L_Q + 1280
OP_H, OP_W = 528, 2112
L_ST = L_OP + 4 * OP_W
L_VEC = L_ST + 128
LDS_SIZE = L_VEC + 128
MASK = 0xFFFFF000
SC = 0.08838834764831845 * 1.4426950408889634
import struct
def f2u(x): return struct.unpack("<I", struct.pack("<f", x))[0]

class RA:
    def __init__(self, start): self.n = start
    def __call__(self, k=1, align=1):
        self.n = (self.n + align - 1) // align * align
        r = self.n; self.n += k; return r

def gen(stamps=False, cap=200000, opts=None, dbgstats=False):
    o = dict(kwait=True)
    if opts: o.update(opts)
    a = Asm()
    V = RA(1)
    vr = lambda b, n: f"v[{b}:{b+n-1}]"
    sX, sK, sV, sWQ, sWO, sWG, sWU, sWD, sOUT, sWS = 4, 8, 12, 16, 20, 24, 28, 32, 36, 40
    srd = lambda b: f"s[{b}:{b+3}]"
    sG, sC, sW, sN = 44, 45, 46, 47
    sT = [48, 49, 50, 51]
    sKV, sKV2 = 52, 53
    sA, sB, sCc, sD = 54, 55, 56, 57
    sCap = 58
    sB8 = 59
    sStampBase = 64
    nst = [0]
    def stamp():
        if stamps:
            i = nst[0]; nst[0] += 1
            a(f"s_memrealtime s[{sStampBase+2*i}:{sStampBase+2*i+1}]")
    def setexec(lo, hi):
        a(f"s_mov_b32 exec_lo, {lo:#x}\ns_mov_b32 exec_hi, {hi:#x}")
    def fullexec():
        a("s_mov_b64 exec, -1")

    a(f"""
    s_cmp_ge_u32 s2, 256
    s_cbranch_scc1 L_end
    s_load_dwordx2 s[{sX}:{sX+1}], s[0:1], 0
    s_load_dwordx2 s[{sWQ}:{sWQ+1}], s[0:1], 24
    s_load_dwordx2 s[{sK}:{sK+1}], s[0:1], 8
    s_load_dwordx2 s[{sV}:{sV+1}], s[0:1], 16
    s_load_dwordx2 s[{sWS}:{sWS+1}], s[0:1], 88
    """)
    stamp()
    vL, vG, vI, vMASK = V(), V(), V(), V()
    vKo = [V() for _ in range(4)]; vVo = [V() for _ in range(2)]; vWQo = V(); vT0 = V(); vT1 = V(); vT2 = V()
    a(f"""
    v_lshrrev_b32 v{vT0}, 6, v0
    v_and_b32 v{vL}, 63, v0
    v_readfirstlane_b32 s{sW}, v{vT0}
    s_and_b32 s{sG}, s2, 7
    s_lshr_b32 s{sC}, s2, 3
    v_lshrrev_b32 v{vG}, 4, v{vL}
    v_and_b32 v{vI}, 15, v{vL}
    v_mov_b32 v{vMASK}, {MASK:#x}
    """)
    for b, size in ((sX, 1024), (sWQ, 4 << 20), (sK, 1 << 27), (sV, 1 << 27), (sWS, WS_SIZE), (sWO, 4 << 20), (sOUT, 1024)):
        a(f"s_mov_b32 s{b+2}, {size:#x}\ns_mov_b32 s{b+3}, 0x20000")
    a(f"s_cmp_eq_u32 s{sG}, 7\ns_cselect_b32 s{sWG+2}, 0, {512*1792*2:#x}")
    a(f"s_mov_b32 s{sWU+2}, s{sWG+2}\ns_mov_b32 s{sWD+2}, s{sWG+2}")
    for b in (sWG, sWU, sWD): a(f"s_mov_b32 s{b+3}, 0x20000")
    a(f"""
    v_xor_b32 v{vT0}, v{vI}, v{vG}
    v_lshlrev_b32 v{vT0}, 4, v{vT0}
    v_lshl_add_u32 v{vKo[0]}, v{vG}, 8, v{vT0}
    v_xor_b32 v{vKo[1]}, 64, v{vKo[0]}
    v_xor_b32 v{vKo[2]}, 0x80, v{vKo[0]}
    v_xor_b32 v{vKo[3]}, 0xc0, v{vKo[0]}
    v_lshlrev_b32 v{vT1}, 1, v{vG}
    v_xor_b32 v{vT0}, v{vI}, v{vT1}
    v_lshlrev_b32 v{vT0}, 4, v{vT0}
    v_lshl_add_u32 v{vVo[0]}, v{vG}, 8, v{vT0}
    v_xor_b32 v{vVo[1]}, 0x80, v{vVo[0]}
    v_and_b32 v{vT0}, 7, v{vL}
    v_xor_b32 v{vT0}, v{vT0}, v{vT1}
    v_lshlrev_b32 v{vT0}, 4, v{vT0}
    v_lshrrev_b32 v{vT2}, 3, v{vL}
    v_lshl_add_u32 v{vWQo}, v{vT2}, 13, v{vT0}
    """)
    vGUo = V(); vXo = V()
    a(f"""
    v_mul_u32_u24 v{vGUo}, 3584, v{vT2}
    v_add_u32 v{vGUo}, v{vGUo}, v{vT0}
    v_lshlrev_b32 v{vXo}, 4, v{vL}
    """)
    a(f"""
    s_lshl_b32 s{sKV}, s{sG}, 24
    s_lshl_b32 s{sA}, s{sC}, 15
    s_add_u32 s{sKV}, s{sKV}, s{sA}
    s_lshl_b32 s{sA}, s{sW}, 13
    s_add_u32 s{sKV}, s{sKV}, s{sA}
    s_add_u32 s{sKV}, s{sKV}, 0xF00000
    s_add_u32 s{sKV2}, s{sKV}, 4096
    s_lshr_b32 s{sA}, s{sC}, 3
    s_lshl_b32 s{sB}, s{sA}, 20
    s_lshl_b32 s{sA}, s{sW}, 18
    s_add_u32 s{sB}, s{sB}, s{sA}
    s_lshl_b32 s{sA}, s{sG}, 10
    s_add_u32 s{sB}, s{sB}, s{sA}
    s_and_b32 s{sA}, s{sC}, 7
    s_lshl_b32 s{sA}, s{sA}, 7
    s_add_u32 s{sB}, s{sB}, s{sA}
    s_lshl_b32 s{sA}, s{sW}, 12
    s_add_u32 s{sA}, s{sA}, {L_WQ}
    s_mov_b32 m0, s{sA}
    s_lshl_b32 s{sB8}, s{sG}, 5
    s_add_u32 s{sB8}, s{sB8}, s{sC}
    s_waitcnt lgkmcnt(0)
    """)
    vA = V(16, 4); vB = V(16, 4)
    vXr = vB
    a(f"buffer_load_dwordx4 {vr(vXr,4)}, v{vXo}, {srd(sX)}, 0 offen")
    for m in range(4):
        a(f"buffer_load_dwordx4 v{vWQo}, {srd(sWQ)}, s{sB} offen offset:{m*1024} nt lds")
        if m < 3: a(f"s_add_u32 s{sB}, s{sB}, {65536-1024}")
    a(f"""
    s_load_dwordx2 s[{sWO}:{sWO+1}], s[0:1], 32
    s_load_dwordx2 s[{sWG}:{sWG+1}], s[0:1], 48
    s_load_dwordx2 s[{sWU}:{sWU+1}], s[0:1], 56
    s_load_dwordx2 s[{sWD}:{sWD+1}], s[0:1], 64
    s_load_dwordx2 s[{sOUT}:{sOUT+1}], s[0:1], 72
    s_load_dword s{sN}, s[{sWS}:{sWS+1}], {WS_NONCE}
    s_lshl_b32 s{sA}, s{sW}, 13
    s_mov_b32 m0, s{sA}
    """)
    for n in range(8):
        if n == 4: a("s_add_u32 m0, m0, 4096")
        a(f"buffer_load_dwordx4 v{vKo[n&3]}, {srd(sK)}, s{sKV if n<4 else sKV2} offen offset:{(n&3)*1024} nt lds")
    a(f"s_add_u32 s{sA}, s{sA}, {L_V}\ns_mov_b32 m0, s{sA}")
    for n in range(8):
        if n == 4: a("s_add_u32 m0, m0, 4096")
        a(f"buffer_load_dwordx4 v{vVo[n&1]}, {srd(sV)}, s{sKV if n<4 else sKV2} offen offset:{(n&3)*1024} nt lds")
    stamp()
    a(f"s_waitcnt lgkmcnt(0)")
    TA = [0x9B1, 0x3C5, 0x6A7, 0xD2B]; TB = [0x1F3, 0x8A5, 0x417, 0xC69]
    for i in range(4):
        a(f"s_mul_i32 s{sT[i]}, s{sN}, {TA[i]:#x}\ns_add_u32 s{sT[i]}, s{sT[i]}, {TB[i]:#x}\ns_and_b32 s{sT[i]}, s{sT[i]}, 0xfff")
    vE = vA; vD = vA + 8
    def wavesum(v, sdst):
        for mod in ("quad_perm:[1,0,3,2] row_mask:0xf", "quad_perm:[2,3,0,1] row_mask:0xf", "row_half_mirror row_mask:0xf",
                    "row_mirror row_mask:0xf", "row_bcast:15 row_mask:0xa", "row_bcast:31 row_mask:0xc"):
            a(f"v_add_f32_dpp v{v}, v{v}, v{v} {mod} bank_mask:0xf")
        a(f"v_readlane_b32 s{sdst}, v{v}, 63")
    a("s_waitcnt vmcnt(20)")
    stamp()
    for k in range(4):
        a(f"v_lshlrev_b32 v{vE+2*k}, 16, v{vXr+k}\nv_and_b32 v{vE+2*k+1}, 0xffff0000, v{vXr+k}")
    a(f"""
    v_add_f32 v{vT0}, v{vE}, v{vE+1}
    v_add_f32 v{vT1}, v{vE+2}, v{vE+3}
    v_add_f32 v{vT2}, v{vE+4}, v{vE+5}
    v_add_f32 v{vD}, v{vE+6}, v{vE+7}
    v_add_f32 v{vT0}, v{vT0}, v{vT1}
    v_add_f32 v{vT2}, v{vT2}, v{vD}
    v_add_f32 v{vT0}, v{vT0}, v{vT2}
    """)
    wavesum(vT0, sA)
    a(f"v_mov_b32 v{vT1}, s{sA}\nv_mul_f32 v{vT1}, {f2u(1/512):#x}, v{vT1}")
    for k in range(8): a(f"v_sub_f32 v{vD+k}, v{vE+k}, v{vT1}")
    a(f"v_mul_f32 v{vT0}, v{vD}, v{vD}")
    for k in range(1, 8): a(f"v_fmac_f32 v{vT0}, v{vD+k}, v{vD+k}")
    wavesum(vT0, sA)
    a(f"""
    v_mov_b32 v{vT2}, s{sA}
    v_mul_f32 v{vT2}, {f2u(1/512):#x}, v{vT2}
    v_cvt_pk_bf16_f32 v{vT0}, v{vT1}, v{vT2}
    v_lshlrev_b32 v{vT1}, 16, v{vT0}
    v_and_b32 v{vT2}, 0xffff0000, v{vT0}
    v_add_f32 v{vT2}, {f2u(1e-5):#x}, v{vT2}
    v_cvt_pk_bf16_f32 v{vT2}, v{vT2}, v{vT2}
    v_and_b32 v{vT2}, 0xffff0000, v{vT2}
    v_sqrt_f32 v{vT2}, v{vT2}
    v_cvt_pk_bf16_f32 v{vT2}, v{vT2}, v{vT2}
    v_and_b32 v{vT2}, 0xffff0000, v{vT2}
    v_rcp_f32 v{vT2}, v{vT2}
    """)
    for k in range(8): a(f"v_sub_f32 v{vD+k}, v{vE+k}, v{vT1}")
    for k in range(4): a(f"v_cvt_pk_bf16_f32 v{vE+k}, v{vD+2*k}, v{vD+2*k+1}")
    for k in range(4): a(f"v_lshlrev_b32 v{vD+2*k}, 16, v{vE+k}\nv_and_b32 v{vD+2*k+1}, 0xffff0000, v{vE+k}")
    for k in range(8): a(f"v_mul_f32 v{vD+k}, v{vD+k}, v{vT2}")
    for k in range(4): a(f"v_cvt_pk_bf16_f32 v{vE+k}, v{vD+2*k}, v{vD+2*k+1}")
    a(f"v_add_u32 v{vT0}, {L_XN}, v{vXo}\nds_write_b128 v{vT0}, {vr(vE,4)}")
    vTRa = V(); vXNa = V()
    a(f"""
    v_lshrrev_b32 v{vT0}, 2, v{vL}
    v_lshlrev_b32 v{vTRa}, 7, v{vT0}
    v_lshrrev_b32 v{vT1}, 1, v{vT0}
    v_and_b32 v{vT1}, 3, v{vT1}
    v_xor_b32 v{vT1}, s{sW}, v{vT1}
    v_lshl_add_u32 v{vTRa}, v{vT1}, 5, v{vTRa}
    v_and_b32 v{vT1}, 3, v{vL}
    v_lshl_add_u32 v{vTRa}, v{vT1}, 3, v{vTRa}
    s_lshr_b32 s{sA}, s{sC}, 3
    s_lshl_b32 s{sA}, s{sA}, 8
    s_add_u32 s{sA}, s{sA}, {L_XN}
    v_lshl_add_u32 v{vXNa}, v{vG}, 3, s{sA}
    """)
    vAcc = V(4, 4); vAcc2 = V(4, 4)
    a(f"s_waitcnt vmcnt(16) lgkmcnt(0)\ns_barrier")
    stamp()
    a(f"v_add_u32 v{vT0}, {L_WQ}, v{vTRa}")
    for kk in range(4):
        a(f"ds_read2_b64 {vr(vB+4*kk,4)}, v{vXNa} offset0:{8*kk} offset1:{8*kk+4}")
        for hh in range(2):
            a(f"ds_read_b64_tr_b16 {vr(vA+4*kk+2*hh,2)}, v{vT0} offset:{kk*4096+hh*2048}")
    for kk in range(4):
        a(f"s_waitcnt lgkmcnt({3*(3-kk)})")
        a(f"v_mfma_f32_16x16x32_bf16 {vr(vAcc,4)}, {vr(vA+4*kk,4)}, {vr(vB+4*kk,4)}, {'0' if kk==0 else vr(vAcc,4)}")
    vPub = V(4, 4)
    a(f"""
    s_lshl_b32 s{sA}, s{sG}, 13
    s_lshr_b32 s{sB}, s{sC}, 3
    s_lshl_b32 s{sB}, s{sB}, 11
    s_add_u32 s{sA}, s{sA}, s{sB}
    s_and_b32 s{sB}, s{sC}, 7
    s_lshl_b32 s{sB}, s{sB}, 8
    s_add_u32 s{sA}, s{sA}, s{sB}
    s_lshl_b32 s{sB}, s{sW}, 6
    s_add_u32 s{sA}, s{sA}, s{sB}
    s_add_u32 s{sA}, s{sA}, {WS_QS}
    v_lshlrev_b32 v{vT0}, 4, v{vG}
    """)
    for r in range(4): a(f"v_and_or_b32 v{vPub+r}, v{vAcc+r}, v{vMASK}, s{sT[r]}")
    setexec(0x00010001, 0x00010001)
    a(f"buffer_store_dwordx4 {vr(vPub,4)}, v{vT0}, {srd(sWS)}, s{sA} offen sc1")
    fullexec()
    stamp()
    vQg = V(); vGa = V(8, 4)
    a(f"""
    v_lshrrev_b32 v{vT0}, 5, v{vL}
    v_and_b32 v{vT1}, 31, v{vL}
    v_lshlrev_b32 v{vT1}, 4, v{vT1}
    v_lshl_add_u32 v{vQg}, v{vT0}, 12, v{vT1}
    s_lshl_b32 s{sD}, s{sG}, 13
    s_lshl_b32 s{sA}, s{sW}, 9
    s_add_u32 s{sD}, s{sD}, s{sA}
    s_add_u32 s{sD}, s{sD}, {WS_QS}
    """)
    if o["kwait"]:
        a("s_waitcnt vmcnt(9)")
    stamp()
    def qgather():
        a(f"buffer_load_dwordx4 {vr(vGa,4)}, v{vQg}, {srd(sWS)}, s{sD} offen sc1")
        a(f"buffer_load_dwordx4 {vr(vGa+4,4)}, v{vQg}, {srd(sWS)}, s{sD} offen offset:2048 sc1")
    qgather()
    a(f"""
    s_and_b32 s{sA}, s{sC}, 7
    s_lshl_b32 s{sA}, s{sA}, 3
    s_lshl_b32 s{sB}, s{sW}, 1
    s_add_u32 s{sA}, s{sA}, s{sB}
    s_mul_i32 s{sA}, s{sA}, {8*3584}
    s_lshr_b32 s{sB}, s{sB8}, 3
    s_lshl_b32 s{sB}, s{sB}, 7
    s_add_u32 s{sA}, s{sA}, s{sB}
    s_add_u32 s{sB}, s{sA}, {8*3584-1024}
    s_lshl_b32 s{sCc}, s{sW}, 11
    s_add_u32 s{sCc}, s{sCc}, {L_WG}
    s_mov_b32 m0, s{sCc}
    """)
    a(f"buffer_load_dwordx4 v{vGUo}, {srd(sWG)}, s{sA} offen nt lds")
    a(f"buffer_load_dwordx4 v{vGUo}, {srd(sWG)}, s{sB} offen offset:1024 nt lds")
    a(f"s_add_u32 m0, m0, {L_WU-L_WG}")
    a(f"buffer_load_dwordx4 v{vGUo}, {srd(sWU)}, s{sA} offen nt lds")
    a(f"buffer_load_dwordx4 v{vGUo}, {srd(sWU)}, s{sB} offen offset:1024 nt lds")
    vW = V(24, 4); vWo = V()
    a(f"""
    v_lshlrev_b32 v{vWo}, 10, v{vG}
    v_lshl_add_u32 v{vWo}, v{vI}, 4, v{vWo}
    s_lshl_b32 s{sA}, s{sW}, 8
    v_add_u32 v{vWo}, s{sA}, v{vWo}
    s_lshl_b32 s{sA}, s{sB8}, 14
    s_lshl_b32 s{sB}, s{sB8}, 13
    """)
    for n in range(4):
        a(f"buffer_load_dwordx4 {vr(vW+4*n,4)}, v{vWo}, {srd(sWO)}, s{sA} offen nt")
        if n < 3: a(f"s_add_u32 s{sA}, s{sA}, 4096")
    for n in range(2):
        a(f"buffer_load_dwordx4 {vr(vW+16+4*n,4)}, v{vWo}, {srd(sWD)}, s{sB} offen nt")
        if n < 1: a(f"s_add_u32 s{sB}, s{sB}, 4096")
    stamp()
    vKf = V(32, 4); vKa = V(4)
    a(f"""
    v_xor_b32 v{vT0}, v{vG}, v{vI}
    v_lshlrev_b32 v{vT0}, 4, v{vT0}
    v_lshl_add_u32 v{vKa}, v{vI}, 8, v{vT0}
    s_lshl_b32 s{sA}, s{sW}, 13
    v_add_u32 v{vKa}, s{sA}, v{vKa}
    """)
    for t in range(1, 4): a(f"v_xor_b32 v{vKa+t}, {t<<6:#x}, v{vKa}")
    if not o["kwait"]:
        a("s_waitcnt vmcnt(21)")
    for T in range(2):
        for t in range(4):
            a(f"ds_read_b128 {vr(vKf+16*T+4*t,4)}, v{vKa+t} offset:{T*4096}")
    a(f"s_mov_b32 s{sCap}, {cap}")
    a("s_waitcnt vmcnt(10)")
    a("L_qchk:")
    for e in range(8): a(f"v_xor_b32 v{vGa+e}, s{sT[e&3]}, v{vGa+e}")
    a(f"""
    v_or3_b32 v{vT0}, v{vGa}, v{vGa+1}, v{vGa+2}
    v_or3_b32 v{vT1}, v{vGa+3}, v{vGa+4}, v{vGa+5}
    v_or3_b32 v{vT0}, v{vT0}, v{vGa+6}, v{vGa+7}
    v_or_b32 v{vT0}, v{vT0}, v{vT1}
    v_and_b32 v{vT0}, 0xfff, v{vT0}
    v_cmp_ne_u32 vcc, 0, v{vT0}
    s_cbranch_vccz L_qok
    s_sub_u32 s{sCap}, s{sCap}, 1
    s_cbranch_scc1 L_qok
    """)
    qgather()
    a("s_waitcnt vmcnt(0)\ns_branch L_qchk\nL_qok:")
    stamp()
    a(f"""
    v_add_f32 v{vGa}, v{vGa}, v{vGa+4}
    v_add_f32 v{vGa+1}, v{vGa+1}, v{vGa+5}
    v_add_f32 v{vGa+2}, v{vGa+2}, v{vGa+6}
    v_add_f32 v{vGa+3}, v{vGa+3}, v{vGa+7}
    v_permlane32_swap_b32 v{vGa}, v{vGa+2}
    v_permlane32_swap_b32 v{vGa+1}, v{vGa+3}
    v_add_f32 v{vGa}, v{vGa}, v{vGa+2}
    v_add_f32 v{vGa+1}, v{vGa+1}, v{vGa+3}
    v_cvt_pk_bf16_f32 v{vGa}, v{vGa}, v{vGa+1}
    v_and_b32 v{vT0}, 31, v{vL}
    v_lshlrev_b32 v{vT0}, 3, v{vT0}
    v_lshrrev_b32 v{vT1}, 5, v{vL}
    v_lshl_add_u32 v{vT0}, v{vT1}, 2, v{vT0}
    s_mul_i32 s{sA}, s{sW}, 320
    s_add_u32 s{sA}, s{sA}, {L_Q}
    v_add_u32 v{vT0}, s{sA}, v{vT0}
    ds_write_b32 v{vT0}, v{vGa}
    v_and_b32 v{vT0}, 3, v{vI}
    v_mul_u32_u24 v{vT0}, 320, v{vT0}
    v_lshl_add_u32 v{vT0}, v{vG}, 4, v{vT0}
    v_add_u32 v{vT0}, {L_Q}, v{vT0}
    s_waitcnt lgkmcnt(0)
    s_barrier
    """)
    vQf = vB
    for t in range(4): a(f"ds_read_b128 {vr(vQf+4*t,4)}, v{vT0} offset:{t*64}")
    vVa = V(8); vVf = V(32, 4)
    a(f"""
    v_lshrrev_b32 v{vT1}, 2, v{vL}
    v_lshlrev_b32 v{vVa}, 8, v{vT1}
    v_and_b32 v{vT1}, 7, v{vT1}
    v_lshl_add_u32 v{vVa}, v{vT1}, 5, v{vVa}
    v_and_b32 v{vT1}, 3, v{vL}
    v_lshl_add_u32 v{vVa}, v{vT1}, 3, v{vVa}
    s_lshl_b32 s{sA}, s{sW}, 13
    s_add_u32 s{sA}, s{sA}, {L_V}
    v_add_u32 v{vVa}, s{sA}, v{vVa}
    """)
    for t in range(1, 8): a(f"v_xor_b32 v{vVa+t}, {t<<5:#x}, v{vVa}")
    vS = V(8, 4)
    for t in range(4):
        a(f"s_waitcnt lgkmcnt({3-t})")
        for T in range(2):
            a(f"v_mfma_f32_16x16x32_bf16 {vr(vS+4*T,4)}, {vr(vKf+16*T+4*t,4)}, {vr(vQf+4*t,4)}, {'0' if t==0 else vr(vS+4*T,4)}")
    for t in range(8):
        for hh in range(2):
            a(f"ds_read_b64_tr_b16 {vr(vVf+4*t+2*hh,2)}, v{vVa+t} offset:{hh*4096}")
    vM = V(); vM2 = V()
    a(f"""
    v_max3_f32 v{vM}, v{vS}, v{vS+1}, v{vS+2}
    v_max3_f32 v{vM2}, v{vS+3}, v{vS+4}, v{vS+5}
    v_max3_f32 v{vM}, v{vM}, v{vS+6}, v{vS+7}
    v_max_f32 v{vM}, v{vM}, v{vM2}
    v_mov_b32 v{vM2}, v{vM}
    v_permlane16_swap_b32 v{vM}, v{vM2}
    v_max_f32 v{vM}, v{vM}, v{vM2}
    v_mov_b32 v{vM2}, v{vM}
    v_permlane32_swap_b32 v{vM}, v{vM2}
    v_max_f32 v{vM}, v{vM}, v{vM2}
    s_mov_b32 s{sA}, {f2u(SC):#x}
    v_mul_f32 v{vM}, s{sA}, v{vM}
    """)
    for e in range(8): a(f"v_fma_f32 v{vS+e}, v{vS+e}, s{sA}, -v{vM}")
    for e in range(8): a(f"v_exp_f32 v{vS+e}, v{vS+e}")
    vP = V(4, 4); vOne = V(4, 4)
    for k in range(4): a(f"v_cvt_pk_bf16_f32 v{vP+k}, v{vS+2*k}, v{vS+2*k+1}")
    for k in range(4): a(f"v_mov_b32 v{vOne+k}, 0x3f803f80")
    vO = vKf; vLs = V(4, 4)
    a(f"v_mfma_f32_16x16x32_bf16 {vr(vLs,4)}, {vr(vOne,4)}, {vr(vP,4)}, 0")
    for t in range(8):
        a(f"s_waitcnt lgkmcnt({2*(7-t)})") if 2*(7-t) <= 15 else None
        a(f"v_mfma_f32_16x16x32_bf16 {vr(vO+4*t,4)}, {vr(vVf+4*t,4)}, {vr(vP,4)}, 0")
    a(f"""
    v_and_b32 v{vT0}, 3, v{vI}
    v_mul_u32_u24 v{vT0}, {OP_H}, v{vT0}
    v_lshl_add_u32 v{vT0}, v{vG}, 4, v{vT0}
    s_mul_i32 s{sA}, s{sW}, {OP_W}
    s_add_u32 s{sA}, s{sA}, {L_OP}
    v_add_u32 v{vT0}, s{sA}, v{vT0}
    v_and_b32 v{vT1}, 3, v{vI}
    v_lshlrev_b32 v{vT1}, 5, v{vT1}
    s_lshl_b32 s{sA}, s{sW}, 3
    s_add_u32 s{sA}, s{sA}, {L_ST}
    v_add_u32 v{vT1}, s{sA}, v{vT1}
    v_mov_b32 v{vM2}, v{vLs}
    """)
    setexec(0x000F000F, 0x000F000F)
    for t in range(8): a(f"ds_write_b128 v{vT0}, {vr(vO+4*t,4)} offset:{t*64}")
    setexec(0x0000000F, 0)
    assert vM2 == vM + 1
    a(f"ds_write_b64 v{vT1}, v[{vM}:{vM2}]") if vM % 2 == 0 else a(f"ds_write_b32 v{vT1}, v{vM}\nds_write_b32 v{vT1}, v{vM2} offset:4")
    fullexec()
    a("s_waitcnt lgkmcnt(0)\ns_barrier")
    stamp()
    a(f"s_cmp_ge_u32 s{sW}, 2\ns_cbranch_scc1 L_nocomb")
    vC = vVf; vSt = vVf + 16; vF = vVf + 24
    a(f"""
    v_and_b32 v{vT0}, 31, v{vL}
    v_lshlrev_b32 v{vT0}, 4, v{vT0}
    v_lshrrev_b32 v{vT1}, 5, v{vL}
    s_lshl_b32 s{sA}, s{sW}, 1
    v_add_u32 v{vT1}, s{sA}, v{vT1}
    v_mul_u32_u24 v{vT2}, {OP_H}, v{vT1}
    v_add_u32 v{vT0}, v{vT0}, v{vT2}
    v_add_u32 v{vT0}, {L_OP}, v{vT0}
    v_lshlrev_b32 v{vT1}, 5, v{vT1}
    v_add_u32 v{vT1}, {L_ST}, v{vT1}
    ds_read_b128 {vr(vSt,4)}, v{vT1}
    ds_read_b128 {vr(vSt+4,4)}, v{vT1} offset:16
    """)
    for w in range(4): a(f"ds_read_b128 {vr(vC+4*w,4)}, v{vT0} offset:{w*OP_W}")
    a(f"""
    s_waitcnt lgkmcnt(4)
    v_max3_f32 v{vT2}, v{vSt}, v{vSt+2}, v{vSt+4}
    v_max_f32 v{vT2}, v{vT2}, v{vSt+6}
    v_and_b32 v{vT2}, v{vMASK}, v{vT2}
    """)
    for w in range(4): a(f"v_sub_f32 v{vF+w}, v{vSt+2*w}, v{vT2}")
    for w in range(4): a(f"v_exp_f32 v{vF+w}, v{vF+w}")
    a(f"v_mul_f32 v{vT1}, v{vF}, v{vSt+1}")
    for w in range(1, 4): a(f"v_fmac_f32 v{vT1}, v{vF+w}, v{vSt+2*w+1}")
    a("s_waitcnt lgkmcnt(0)")
    for e in range(4): a(f"v_mul_f32 v{vPub+e}, v{vF}, v{vC+e}")
    for w in range(1, 4):
        for e in range(4): a(f"v_fmac_f32 v{vPub+e}, v{vF+w}, v{vC+4*w+e}")
    for e in range(4): a(f"v_and_or_b32 v{vPub+e}, v{vPub+e}, v{vMASK}, s{sT[e]}")
    vPub2 = vVf + 28
    a(f"""
    v_lshlrev_b32 v{vT0}, 4, v{vL}
    s_lshl_b32 s{sA}, s{sB8}, 11
    s_lshl_b32 s{sB}, s{sW}, 10
    s_add_u32 s{sA}, s{sA}, s{sB}
    s_add_u32 s{sA}, s{sA}, {WS_OPD}
    buffer_store_dwordx4 {vr(vPub,4)}, v{vT0}, {srd(sWS)}, s{sA} offen sc1
    v_or_b32 v{vPub2}, s{sT[0]}, v{vT2}
    v_and_or_b32 v{vPub2+1}, v{vT1}, v{vMASK}, s{sT[1]}
    v_mov_b32 v{vPub2+2}, s{sT[2]}
    v_mov_b32 v{vPub2+3}, s{sT[3]}
    v_lshrrev_b32 v{vT0}, 5, v{vL}
    v_lshlrev_b32 v{vT0}, 4, v{vT0}
    s_lshl_b32 s{sA}, s{sB8}, 6
    s_lshl_b32 s{sB}, s{sW}, 5
    s_add_u32 s{sA}, s{sA}, s{sB}
    s_add_u32 s{sA}, s{sA}, {WS_OPS}
    """)
    setexec(0x1, 0x1)
    a(f"buffer_store_dwordx4 {vr(vPub2,4)}, v{vT0}, {srd(sWS)}, s{sA} offen sc1")
    fullexec()
    a("s_waitcnt vmcnt(8)\ns_branch L_comb_done\nL_nocomb:\ns_waitcnt vmcnt(6)\nL_comb_done:\ns_barrier")
    stamp()
    a(f"""
    s_and_b32 s{sA}, s{sC}, 7
    s_lshl_b32 s{sA}, s{sA}, 7
    s_add_u32 s{sA}, s{sA}, {L_XN}
    v_lshl_add_u32 v{vXNa}, v{vG}, 3, s{sA}
    v_add_u32 v{vT0}, {L_WG}, v{vTRa}
    """)
    for kk in range(2):
        a(f"ds_read2_b64 {vr(vB+4*kk,4)}, v{vXNa} offset0:{8*kk} offset1:{8*kk+4}")
        for hh in range(2):
            a(f"ds_read_b64_tr_b16 {vr(vA+4*kk+2*hh,2)}, v{vT0} offset:{kk*4096+hh*2048}")
        for hh in range(2):
            a(f"ds_read_b64_tr_b16 {vr(vA+8+4*kk+2*hh,2)}, v{vT0} offset:{8192+kk*4096+hh*2048}")
    for kk in range(2):
        a(f"s_waitcnt lgkmcnt({5*(1-kk)})")
        a(f"v_mfma_f32_16x16x32_bf16 {vr(vAcc,4)}, {vr(vA+4*kk,4)}, {vr(vB+4*kk,4)}, {'0' if kk==0 else vr(vAcc,4)}")
        a(f"v_mfma_f32_16x16x32_bf16 {vr(vAcc2,4)}, {vr(vA+8+4*kk,4)}, {vr(vB+4*kk,4)}, {'0' if kk==0 else vr(vAcc2,4)}")
    a(f"""
    v_cmp_eq_u32 vcc, 1, v{vI}
    v_lshlrev_b32 v{vT0}, 5, v{vG}
    v_lshl_add_u32 v{vT0}, v{vI}, 4, v{vT0}
    s_lshl_b32 s{sA}, s{sB8}, 9
    s_lshl_b32 s{sB}, s{sW}, 7
    s_add_u32 s{sA}, s{sA}, s{sB}
    s_add_u32 s{sA}, s{sA}, {WS_GUS}
    v_cndmask_b32 v{vPub}, v{vAcc}, v{vAcc+2}, vcc
    v_cndmask_b32 v{vPub+1}, v{vAcc+1}, v{vAcc+3}, vcc
    v_cndmask_b32 v{vPub+2}, v{vAcc2}, v{vAcc2+2}, vcc
    v_cndmask_b32 v{vPub+3}, v{vAcc2+1}, v{vAcc2+3}, vcc
    """)
    for e in range(4): a(f"v_and_or_b32 v{vPub+e}, v{vPub+e}, v{vMASK}, s{sT[e]}")
    setexec(0x00030003, 0x00030003)
    a(f"buffer_store_dwordx4 {vr(vPub,4)}, v{vT0}, {srd(sWS)}, s{sA} offen sc1")
    fullexec()
    stamp()
    a(f"s_mov_b32 s{sCap}, {cap}")
    a(f"s_cmp_eq_u32 s{sW}, 1\ns_cbranch_scc1 L_bgather\ns_cmp_eq_u32 s{sW}, 0\ns_cbranch_scc0 L_vecdone")
    vH = vKf; vHa = V(); vHs = V()
    a(f"""
    v_lshrrev_b32 v{vT0}, 1, v{vL}
    v_and_b32 v{vT1}, 1, v{vL}
    v_lshlrev_b32 v{vHa}, 11, v{vT0}
    v_lshl_add_u32 v{vHa}, v{vT1}, 5, v{vHa}
    v_lshlrev_b32 v{vHs}, 6, v{vT0}
    s_lshl_b32 s{sA}, s{sG}, 16
    s_lshr_b32 s{sB}, s{sC}, 3
    s_lshl_b32 s{sCc}, s{sB}, 9
    s_add_u32 s{sA}, s{sA}, s{sCc}
    s_and_b32 s{sCc}, s{sC}, 7
    s_lshl_b32 s{sCc}, s{sCc}, 6
    s_add_u32 s{sA}, s{sA}, s{sCc}
    s_add_u32 s{sA}, s{sA}, {WS_OPD}
    s_lshl_b32 s{sCc}, s{sG}, 11
    s_lshl_b32 s{sB}, s{sB}, 4
    s_add_u32 s{sB}, s{sB}, s{sCc}
    s_add_u32 s{sB}, s{sB}, {WS_OPS}
    L_hpoll:
    buffer_load_dwordx4 {vr(vH+8,4)}, v{vHs}, {srd(sWS)}, s{sB} offen sc1
    buffer_load_dwordx4 {vr(vH,4)}, v{vHa}, {srd(sWS)}, s{sA} offen sc1
    buffer_load_dwordx4 {vr(vH+4,4)}, v{vHa}, {srd(sWS)}, s{sA} offen offset:16 sc1
    s_waitcnt vmcnt(0)
    """)
    for e in range(12): a(f"v_xor_b32 v{vH+e}, s{sT[e&3]}, v{vH+e}")
    a(f"""
    v_or3_b32 v{vT0}, v{vH}, v{vH+1}, v{vH+2}
    v_or3_b32 v{vT1}, v{vH+3}, v{vH+4}, v{vH+5}
    v_or3_b32 v{vT2}, v{vH+6}, v{vH+7}, v{vH+8}
    v_or3_b32 v{vT0}, v{vT0}, v{vH+9}, v{vH+10}
    v_or3_b32 v{vT1}, v{vT1}, v{vT2}, v{vH+11}
    v_or_b32 v{vT0}, v{vT0}, v{vT1}
    v_and_b32 v{vT0}, 0xfff, v{vT0}
    v_cmp_ne_u32 vcc, 0, v{vT0}
    s_cbranch_vccz L_hok
    s_sub_u32 s{sCap}, s{sCap}, 1
    s_cbranch_scc0 L_hpoll
    L_hok:
    """)
    stamp_h = None
    m, l = vH + 8, vH + 9
    a(f"""
    v_max_f32_dpp v{vT0}, v{m}, v{m} row_ror:2 row_mask:0xf bank_mask:0xf
    v_max_f32_dpp v{vT0}, v{vT0}, v{vT0} row_ror:4 row_mask:0xf bank_mask:0xf
    v_max_f32_dpp v{vT0}, v{vT0}, v{vT0} row_ror:8 row_mask:0xf bank_mask:0xf
    v_mov_b32 v{vT1}, v{vT0}
    v_permlane16_swap_b32 v{vT0}, v{vT1}
    v_max_f32 v{vT0}, v{vT0}, v{vT1}
    v_mov_b32 v{vT1}, v{vT0}
    v_permlane32_swap_b32 v{vT0}, v{vT1}
    v_max_f32 v{vT0}, v{vT0}, v{vT1}
    v_sub_f32 v{vT0}, v{m}, v{vT0}
    v_exp_f32 v{vT0}, v{vT0}
    """)
    for e in range(8): a(f"v_mul_f32 v{vH+e}, v{vT0}, v{vH+e}")
    a(f"v_mul_f32 v{l}, v{vT0}, v{l}")
    for e in range(4): a(f"v_permlane32_swap_b32 v{vH+e}, v{vH+4+e}")
    a(f"v_mov_b32 v{vT1}, v{l}")
    for e in range(4): a(f"v_add_f32 v{vH+e}, v{vH+e}, v{vH+4+e}")
    a(f"""
    v_permlane32_swap_b32 v{l}, v{vT1}
    v_permlane16_swap_b32 v{vH}, v{vH+2}
    v_permlane16_swap_b32 v{vH+1}, v{vH+3}
    v_add_f32 v{l}, v{l}, v{vT1}
    v_add_f32 v{vH}, v{vH}, v{vH+2}
    v_add_f32 v{vH+1}, v{vH+1}, v{vH+3}
    v_mov_b32 v{vT1}, v{l}
    v_permlane16_swap_b32 v{l}, v{vT1}
    v_add_f32 v{l}, v{l}, v{vT1}
    """)
    for rot in (8, 4, 2):
        for x in (vH, vH + 1, l):
            a(f"v_add_f32_dpp v{x}, v{x}, v{x} row_ror:{rot} row_mask:0xf bank_mask:0xf")
    a(f"""
    v_rcp_f32 v{l}, v{l}
    v_and_b32 v{vT0}, 1, v{vG}
    v_lshlrev_b32 v{vT0}, 6, v{vT0}
    v_lshrrev_b32 v{vT1}, 1, v{vG}
    v_lshl_add_u32 v{vT0}, v{vT1}, 2, v{vT0}
    v_and_b32 v{vT1}, 1, v{vL}
    v_lshl_add_u32 v{vT0}, v{vT1}, 3, v{vT0}
    v_add_u32 v{vT0}, {L_VEC}, v{vT0}
    v_mul_f32 v{vH}, v{vH}, v{l}
    v_mul_f32 v{vH+1}, v{vH+1}, v{l}
    v_cvt_pk_bf16_f32 v{vH}, v{vH}, v{vH}
    v_cvt_pk_bf16_f32 v{vH+1}, v{vH+1}, v{vH+1}
    """)
    setexec(0x00030003, 0x00030003)
    a(f"ds_write_b32 v{vT0}, v{vH}\nds_write_b32 v{vT0}, v{vH+1} offset:32")
    fullexec()
    a("s_branch L_vecdone")
    a(f"""
    L_bgather:
    v_and_b32 v{vT0}, 7, v{vL}
    v_lshlrev_b32 v{vHa}, 9, v{vT0}
    v_lshrrev_b32 v{vT1}, 3, v{vL}
    v_and_b32 v{vT1}, 3, v{vT1}
    v_lshl_add_u32 v{vHa}, v{vT1}, 4, v{vHa}
    s_and_b32 s{sA}, s{sB8}, 0xf8
    s_lshl_b32 s{sA}, s{sA}, 9
    s_and_b32 s{sB}, s{sC}, 7
    s_lshl_b32 s{sB}, s{sB}, 6
    s_add_u32 s{sA}, s{sA}, s{sB}
    s_add_u32 s{sA}, s{sA}, {WS_GUS}
    L_bpoll:
    buffer_load_dwordx4 {vr(vH,4)}, v{vHa}, {srd(sWS)}, s{sA} offen sc1
    s_waitcnt vmcnt(0)
    """)
    for e in range(4): a(f"v_xor_b32 v{vH+e}, s{sT[e]}, v{vH+e}")
    a(f"""
    v_or3_b32 v{vT0}, v{vH}, v{vH+1}, v{vH+2}
    v_or_b32 v{vT0}, v{vT0}, v{vH+3}
    v_and_b32 v{vT0}, 0xfff, v{vT0}
    v_cmp_ne_u32 vcc, 0, v{vT0}
    s_cbranch_vccz L_bok
    s_sub_u32 s{sCap}, s{sCap}, 1
    s_cbranch_scc0 L_bpoll
    L_bok:
    """)
    for mod in ("quad_perm:[1,0,3,2]", "quad_perm:[2,3,0,1]", "row_half_mirror"):
        for e in range(4):
            a(f"v_add_f32_dpp v{vH+e}, v{vH+e}, v{vH+e} {mod} row_mask:0xf bank_mask:0xf")
    a(f"""
    v_cvt_pk_bf16_f32 v{vH+4}, v{vH}, v{vH+1}
    v_cvt_pk_bf16_f32 v{vH+5}, v{vH+2}, v{vH+3}
    v_lshlrev_b32 v{vH}, 16, v{vH+4}
    v_and_b32 v{vH+1}, 0xffff0000, v{vH+4}
    v_lshlrev_b32 v{vH+2}, 16, v{vH+5}
    v_and_b32 v{vH+3}, 0xffff0000, v{vH+5}
    v_mul_f32 v{vH}, v{vH}, v{vH+2}
    v_mul_f32 v{vH+1}, v{vH+1}, v{vH+3}
    v_cvt_pk_bf16_f32 v{vH}, v{vH}, v{vH}
    v_cvt_pk_bf16_f32 v{vH+1}, v{vH+1}, v{vH+1}
    v_lshrrev_b32 v{vT1}, 3, v{vL}
    v_and_b32 v{vT0}, 1, v{vT1}
    v_lshlrev_b32 v{vT0}, 6, v{vT0}
    v_lshrrev_b32 v{vT1}, 1, v{vT1}
    v_and_b32 v{vT1}, 1, v{vT1}
    v_lshl_add_u32 v{vT0}, v{vT1}, 2, v{vT0}
    v_add_u32 v{vT0}, {L_VEC+16}, v{vT0}
    """)
    setexec(0x01010101, 0)
    a(f"ds_write_b32 v{vT0}, v{vH}\nds_write_b32 v{vT0}, v{vH+1} offset:32")
    fullexec()
    a("L_vecdone:")
    vMk = vVf; vVV = vVf + 4; vAd = vVf + 12
    a(f"""
    v_and_b32 v{vT0}, 1, v{vI}
    v_cmp_eq_u32 vcc, 1, v{vT0}
    v_mov_b32 v{vT1}, 0xffff
    v_mov_b32 v{vT2}, 0xffff0000
    v_cndmask_b32 v{vT1}, v{vT1}, v{vT2}, vcc
    v_lshrrev_b32 v{vT0}, 1, v{vI}
    """)
    for q in range(4):
        a(f"v_cmp_eq_u32 vcc, {q}, v{vT0}\nv_cndmask_b32 v{vMk+q}, 0, v{vT1}, vcc")
    a(f"""
    v_lshlrev_b32 v{vT0}, 5, v{vG}
    v_add_u32 v{vT0}, {L_VEC}, v{vT0}
    s_waitcnt vmcnt(0) lgkmcnt(0)
    s_barrier
    """)
    stamp()
    a(f"ds_read_b128 {vr(vVV,4)}, v{vT0}\nds_read_b64 {vr(vVV+4,2)}, v{vT0} offset:16")
    for n in range(6):
        if n == 0: a("s_waitcnt lgkmcnt(1)")
        if n == 4: a("s_waitcnt lgkmcnt(0)")
        d = vAd + 4 * (n & 1)
        for q in range(4): a(f"v_and_b32 v{d+q}, v{vVV+n}, v{vMk+q}")
        a(f"v_mfma_f32_16x16x32_bf16 {vr(vAcc,4)}, {vr(d,4)}, {vr(vW+4*n,4)}, {'0' if n==0 else vr(vAcc,4)}")
    a(f"""
    v_lshlrev_b32 v{vT0}, 5, v{vI}
    v_lshl_add_u32 v{vT0}, v{vG}, 4, v{vT0}
    s_lshl_b32 s{sA}, s2, 11
    s_lshl_b32 s{sB}, s{sW}, 9
    s_add_u32 s{sA}, s{sA}, s{sB}
    s_add_u32 s{sA}, s{sA}, {WS_FIN}
    """)
    for e in range(4): a(f"v_and_or_b32 v{vPub+e}, v{vAcc+e}, v{vMASK}, s{sT[e]}")
    setexec(0xffffffff, 0)
    a(f"buffer_store_dwordx4 {vr(vPub,4)}, v{vT0}, {srd(sWS)}, s{sA} offen sc1")
    fullexec()
    stamp()
    a(f"""
    s_cmp_lg_u32 s{sW}, 0
    s_cbranch_scc1 L_fin
    s_cmp_ge_u32 s{sC}, 16
    s_cbranch_scc1 L_fin
    s_lshl_b32 s{sCc}, s{sG}, 4
    s_add_u32 s{sCc}, s{sCc}, s{sC}
    s_lshl_b32 s{sA}, s{sCc}, 4
    s_add_u32 s{sA}, s{sA}, {WS_FIN}
    s_add_u32 s{sB}, s{sA}, 0x20000
    s_add_u32 s{sD}, s{sB}, 0x20000
    s_add_u32 s{sKV}, s{sD}, 0x20000
    v_lshlrev_b32 v{vHa}, 11, v{vL}
    s_lshl_b32 s{sCc}, s{sCc}, 3
    v_lshl_add_u32 v{vHs}, v{vG}, 1, s{sCc}
    buffer_load_ushort v{vT2}, v{vHs}, {srd(sX)}, 0 offen
    s_mov_b32 s{sCap}, {cap}
    L_fpoll:
    """)
    vFn = vKf + 16
    for n, s in enumerate((sA, sB, sD, sKV)):
        a(f"buffer_load_dwordx4 {vr(vFn+4*n,4)}, v{vHa}, {srd(sWS)}, s{s} offen sc1")
    a("s_waitcnt vmcnt(0)")
    for e in range(16): a(f"v_xor_b32 v{vFn+e}, s{sT[e&3]}, v{vFn+e}")
    a(f"v_or3_b32 v{vT0}, v{vFn}, v{vFn+1}, v{vFn+2}\nv_or3_b32 v{vT1}, v{vFn+3}, v{vFn+4}, v{vFn+5}")
    for k in range(6, 16, 4):
        a(f"v_or3_b32 v{vT0}, v{vT0}, v{vFn+k}, v{vFn+k+1}")
        if k + 3 < 16: a(f"v_or3_b32 v{vT1}, v{vT1}, v{vFn+k+2}, v{vFn+k+3}")
    a(f"""
    v_or_b32 v{vT0}, v{vT0}, v{vT1}
    v_and_b32 v{vT0}, 0xfff, v{vT0}
    v_cmp_ne_u32 vcc, 0, v{vT0}
    s_cbranch_vccz L_fok
    s_sub_u32 s{sCap}, s{sCap}, 1
    s_cbranch_scc0 L_fpoll
    L_fok:
    """)
    for e in range(4):
        a(f"v_add_f32 v{vFn+e}, v{vFn+e}, v{vFn+4+e}\nv_add_f32 v{vFn+8+e}, v{vFn+8+e}, v{vFn+12+e}")
    for e in range(4): a(f"v_add_f32 v{vFn+e}, v{vFn+e}, v{vFn+8+e}")
    a(f"""
    v_permlane32_swap_b32 v{vFn}, v{vFn+2}
    v_permlane32_swap_b32 v{vFn+1}, v{vFn+3}
    v_add_f32 v{vFn}, v{vFn}, v{vFn+2}
    v_add_f32 v{vFn+1}, v{vFn+1}, v{vFn+3}
    v_permlane16_swap_b32 v{vFn}, v{vFn+1}
    v_add_f32 v{vFn}, v{vFn}, v{vFn+1}
    """)
    for rot in (8, 4, 2, 1):
        a(f"v_add_f32_dpp v{vFn}, v{vFn}, v{vFn} row_ror:{rot} row_mask:0xf bank_mask:0xf")
    a(f"""
    v_lshlrev_b32 v{vT2}, 16, v{vT2}
    v_add_f32 v{vFn}, v{vFn}, v{vT2}
    v_cvt_pk_bf16_f32 v{vFn}, v{vFn}, v{vFn}
    """)
    setexec(0x00010001, 0x00010001)
    a(f"buffer_store_short v{vFn}, v{vHs}, {srd(sOUT)}, 0 offen")
    fullexec()
    a(f"""
    s_cmp_lg_u32 s2, 0
    s_cbranch_scc1 L_fin
    s_add_u32 s{sA}, s{sN}, 1
    v_mov_b32 v{vT0}, s{sA}
    v_mov_b32 v{vT1}, {WS_NONCE}
    """)
    setexec(1, 0)
    a(f"buffer_store_dword v{vT0}, v{vT1}, {srd(sWS)}, 0 offen sc1")
    fullexec()
    a("L_fin:")
    stamp()
    if dbgstats:
        a(f"""
        s_waitcnt lgkmcnt(0)
        s_load_dwordx2 s[{sX}:{sX+1}], s[0:1], 80
        s_mov_b32 s{sX+2}, 256
        s_waitcnt lgkmcnt(0)
        s_not_b32 s{sA}, s{sStampBase}
        v_mov_b32 v{vT0}, s{sA}
        """)
        for i in range(1, nst[0]):
            a(f"v_writelane_b32 v{vT0}, s{sStampBase+2*i}, {i}")
        a(f"v_writelane_b32 v{vT0}, s{sStampBase}, 14")
        a(f"v_lshlrev_b32 v{vT1}, 2, v{vL}")
        setexec(0x7fff, 0)
        a(f"buffer_atomic_umax v{vT0}, v{vT1}, {srd(sX)}, 0 offen")
        fullexec()
    elif stamps:
        a(f"s_waitcnt lgkmcnt(0)\nv_mov_b32 v{vT0}, 0")
        for i in range(nst[0]):
            a(f"v_writelane_b32 v{vT0}, s{sStampBase+2*i}, {i}")
        a(f"""
        s_lshl_b32 s{sA}, s2, 10
        s_lshl_b32 s{sB}, s{sW}, 8
        s_add_u32 s{sA}, s{sA}, s{sB}
        s_add_u32 s{sA}, s{sA}, {WS_DBG}
        v_lshlrev_b32 v{vT1}, 2, v{vL}
        buffer_store_dword v{vT0}, v{vT1}, {srd(sWS)}, s{sA} offen
        """)
    a("L_end:\ns_endpgm")
    nv = V.n
    body = a.text()
    txt = HEADER + f"; @launch grid=(256,1,1) block=(256,1,1) lds={LDS_SIZE}\n"
    txt += '.amdgcn_target "amdgcn-amd-amdhsa--gfx950"\n.text\n'
    txt += f".globl {KNAME}\n.p2align 8\n.type {KNAME},@function\n{KNAME}:\n" + body
    nvr = (nv + 7) // 8 * 8
    txt += f""".section .rodata,"a"
.p2align 6
.amdhsa_kernel {KNAME}
  .amdhsa_next_free_vgpr {nvr}
  .amdhsa_next_free_sgpr 102
  .amdhsa_accum_offset {nvr}
  .amdhsa_group_segment_fixed_size 0
  .amdhsa_kernarg_size 96
  .amdhsa_user_sgpr_count 2
  .amdhsa_user_sgpr_kernarg_segment_ptr 1
  .amdhsa_system_sgpr_workgroup_id_x 1
.end_amdhsa_kernel
"""
    return txt, nst[0], nv

if __name__ == "__main__":
    t, n, nv = gen(stamps=False)
    open("k1.s", "w").write(t)
    t2, n, nv = gen(stamps=True, cap=20000)
    open("k1_st.s", "w").write(t2)
    t3, n, nv = gen(stamps=True, cap=20000, dbgstats=True)
    open("k1_dbg.s", "w").write(t3)
    print("stamps", n, "vgprs", nv, "lds", LDS_SIZE)
```

```python
import sys, json
from asmlib import Asm
from gen1 import KNAME, HEADER, L_K, L_V, L_WQ, L_WG, L_WU
def gen(order, flags="nt", skipB7=True, layout="std"):
    a = Asm()
    sX, sK, sV, sWQ, sWO, sWG, sWU, sWD, sOUT, sWS = 4, 8, 12, 16, 20, 24, 28, 32, 36, 40
    srd = lambda b: f"s[{b}:{b+3}]"
    sG, sC, sW = 44, 45, 46
    a(f"""
    s_cmp_ge_u32 s2, 256
    s_cbranch_scc1 L_end
    s_load_dwordx2 s[{sX}:{sX+1}], s[0:1], 0
    s_load_dwordx2 s[{sWQ}:{sWQ+1}], s[0:1], 24
    s_load_dwordx2 s[{sK}:{sK+1}], s[0:1], 8
    s_load_dwordx2 s[{sV}:{sV+1}], s[0:1], 16
    s_load_dwordx2 s[{sWS}:{sWS+1}], s[0:1], 88
    s_memrealtime s[64:65]
    v_lshrrev_b32 v12, 6, v0
    v_and_b32 v1, 63, v0
    v_readfirstlane_b32 s{sW}, v12
    s_and_b32 s{sG}, s2, 7
    s_lshr_b32 s{sC}, s2, 3
    v_lshrrev_b32 v2, 4, v1
    v_and_b32 v3, 15, v1
    s_waitcnt lgkmcnt(0)
    s_load_dwordx2 s[{sWO}:{sWO+1}], s[0:1], 32
    s_load_dwordx2 s[{sWG}:{sWG+1}], s[0:1], 48
    s_load_dwordx2 s[{sWU}:{sWU+1}], s[0:1], 56
    s_load_dwordx2 s[{sWD}:{sWD+1}], s[0:1], 64
    """)
    for b, size in ((sX, 1024), (sWQ, 4 << 20), (sK, 1 << 27), (sV, 1 << 27), (sWS, 0x400000), (sWO, 4 << 20)):
        a(f"s_mov_b32 s{b+2}, {size:#x}\ns_mov_b32 s{b+3}, 0x20000")
    a(f"s_cmp_eq_u32 s{sG}, 7\ns_cselect_b32 s{sWG+2}, 0, {512*1792*2:#x}")
    a(f"s_mov_b32 s{sWU+2}, s{sWG+2}\ns_mov_b32 s{sWD+2}, s{sWG+2}")
    for b in (sWG, sWU, sWD): a(f"s_mov_b32 s{b+3}, 0x20000")
    a(f"""
    v_xor_b32 v12, v3, v2
    v_lshlrev_b32 v12, 4, v12
    v_lshl_add_u32 v5, v2, 8, v12
    v_and_b32 v12, 7, v1
    v_lshlrev_b32 v13, 1, v2
    v_xor_b32 v12, v12, v13
    v_lshlrev_b32 v12, 4, v12
    v_lshrrev_b32 v14, 3, v1
    v_lshl_add_u32 v11, v14, 13, v12
    v_mul_u32_u24 v10, 3584, v14
    v_add_u32 v10, v10, v12
    v_lshlrev_b32 v9, 4, v1
    v_lshlrev_b32 v8, 10, v2
    v_lshl_add_u32 v8, v3, 4, v8
    s_lshl_b32 s54, s{sW}, 8
    v_add_u32 v8, s54, v8
    s_lshl_b32 s52, s{sG}, 24
    s_lshl_b32 s54, s{sC}, 15
    s_add_u32 s52, s52, s54
    s_lshl_b32 s54, s{sW}, 13
    s_add_u32 s52, s52, s54
    s_add_u32 s52, s52, 0xF00000
    s_lshr_b32 s54, s{sC}, 3
    s_lshl_b32 s55, s54, 20
    s_lshl_b32 s54, s{sW}, 18
    s_add_u32 s55, s55, s54
    s_lshl_b32 s54, s{sG}, 10
    s_add_u32 s55, s55, s54
    s_and_b32 s54, s{sC}, 7
    s_lshl_b32 s54, s54, 7
    s_add_u32 s55, s55, s54
    s_lshl_b32 s59, s{sG}, 5
    s_add_u32 s59, s59, s{sC}
    s_and_b32 s54, s{sC}, 7
    s_lshl_b32 s54, s54, 3
    s_lshl_b32 s56, s{sW}, 1
    s_add_u32 s54, s54, s56
    s_mul_i32 s56, s54, {8*3584}
    s_lshr_b32 s54, s59, 3
    s_lshl_b32 s54, s54, 7
    s_add_u32 s56, s56, s54
    s_lshl_b32 s57, s59, 14
    s_lshl_b32 s58, s59, 13
    s_mul_i32 s53, s{sW}, {32*1024}
    s_waitcnt lgkmcnt(0)
    """)
    n = [0]
    marks = []
    def ld(vaddr, sr, soff_expr_base, add):
        a(f"s_add_u32 s3, s{soff_expr_base}, {add}\ns_mov_b32 m0, s53\ns_add_u32 s53, s53, 1024")
        a(f"buffer_load_dwordx4 v{vaddr}, {srd(sr)}, s3 offen {flags} lds"); n[0] += 1
    cur = dict(K=0, V=0, wq=0, gu=0, wo=0, wd=0)
    for item in order.split(","):
        nm, cnt = (item.split(":") + [None])[:2]
        tot = dict(K=8, V=8, wq=4, gu=4, wo=4, wd=2, x=1)[nm]
        cnt = int(cnt) if cnt else tot - cur.get(nm, 0)
        for _ in range(cnt):
            i = cur.get(nm, 0)
            if nm == "K": ld(5, sK, 52, i*1024)
            elif nm == "V": ld(5, sV, 52, i*1024)
            elif nm == "wq": ld(11, sWQ, 55, i*65536)
            elif nm == "gu": ld(10, sWG if i < 2 else sWU, 56, (i & 1)*8*3584)
            elif nm == "wo": ld(8, sWO, 57, i*4096)
            elif nm == "wd": ld(8, sWD, 58, i*4096)
            elif nm == "x": ld(9, sX, 53, 0) if False else (a(f"buffer_load_dwordx4 v[16:19], v9, {srd(sX)}, 0 offen"), n.__setitem__(0, n[0]+1))
            cur[nm] = i + 1
        marks.append((item, n[0]))
    a("s_memrealtime s[66:67]")
    tot = n[0]
    k = 0
    for item, upto in marks:
        a(f"s_waitcnt vmcnt({tot-upto})\ns_memrealtime s[{68+2*k}:{69+2*k}]"); k += 1
    a("s_waitcnt lgkmcnt(0)\nv_mov_b32 v12, 0")
    for i in range(2 + k): a(f"v_writelane_b32 v12, s{64+2*i}, {i}")
    a(f"""
    s_lshl_b32 s54, s2, 10
    s_lshl_b32 s55, s{sW}, 8
    s_add_u32 s54, s54, s55
    s_add_u32 s54, s54, 0x200000
    v_lshlrev_b32 v13, 2, v1
    buffer_store_dword v12, v13, {srd(sWS)}, s54 offen
    L_end:
    s_endpgm""")
    txt = HEADER + f"; @launch grid=(256,1,1) block=(256,1,1) lds=131072\n"
    txt += '.amdgcn_target "amdgcn-amd-amdhsa--gfx950"\n.text\n'
    txt += f".globl {KNAME}\n.p2align 8\n.type {KNAME},@function\n{KNAME}:\n" + a.text()
    txt += f""".section .rodata,"a"
.p2align 6
.amdhsa_kernel {KNAME}
  .amdhsa_next_free_vgpr 64
  .amdhsa_next_free_sgpr 102
  .amdhsa_accum_offset 64
  .amdhsa_group_segment_fixed_size 0
  .amdhsa_kernarg_size 96
  .amdhsa_user_sgpr_count 2
  .amdhsa_user_sgpr_kernarg_segment_ptr 1
  .amdhsa_system_sgpr_workgroup_id_x 1
.end_amdhsa_kernel
"""
    return txt, 2 + k, ["start", "issued"] + [m[0] for m in marks]
if __name__ == "__main__":
    cfg = {"so_a": "x,wq,gu,K,V,wo,wd", "so_b": "x,wq,K,V,gu,wo,wd", "so_c": "K,V,wo,wd", "so_d": "K,V", "so_e": "wq,gu", "so_f": "wq,gu,wo,wd", "so_g": "wo,wd,K,V,wq,gu"}
    meta = {}
    for nm, o in cfg.items():
        t, n, names = gen(o)
        open(f"exp/{nm}.s", "w").write(t); meta[nm] = (n, ",".join(names))
    for nm, o, fl in [("so_a_plain", cfg["so_a"], ""), ("so_a_sc1nt", cfg["so_a"], "sc1 nt"), ("so_a_sc0nt", cfg["so_a"], "sc0 nt")]:
        t, n, names = gen(o, flags=fl)
        open(f"exp/{nm}.s", "w").write(t); meta[nm] = (n, ",".join(names))
    json.dump(meta, open("so_meta.json", "w"))
```

```python
import sys, struct, json
from asmlib import Asm

KNAME = "parallel_sum__sliding_block_cached__glu_gated_bilinear__decode_kernel"
HEADER = """; out = x + Attn(LN(x)) + BilinearGLU(LN(x))      (decode step, last 4096 keys, 32 q heads / 8 kv heads)
; One launch: 256 workgroups x 5 waves.  g = id & 7 (kv head), c = id >> 3.
;   wave 0     loader  : LDS-DMA stream x, wq tile, K, V, gate/up tile, wo/wd tile (<= 20 KB in flight), LDS flags on landing,
;                        -> head combine -> wo/wd tile product -> (hand-off)
; Hand-offs live in d_ws as tagged dwords (20-bit value | 12-bit tag of the launch nonce).  Groups found on one XCD
;   0 A_x | 8 A_k_cache | 16 A_v_cache | 24 A_wq | 32 A_wo | 40 B_x | 48 B_w_gate | 56 B_w_up | 64 B_w_down
"""
WS_NONCE = 0
WS_QS  = 0x10000
WS_QA  = 0x50000
WS_GUS = 0x20000
WS_OPS = 0x40000
WS_OPD = 0x80000
WS_FIN = 0x100000
WS_DBG = 0x200000
WS_SIZE = 0x400000
L_K, L_V, L_WQ, L_WG, L_WU, L_WO, L_WD = 0, 32768, 65536, 81920, 90112, 98304, 114688
L_X = 122880
L_XN = L_X + 1024
L_Q = L_XN + 1024
L_MX = L_Q + 1280
L_P = L_MX + 64
L_VEC = L_P + 1024
L_FLG = L_VEC + 384
LDS_SIZE = L_FLG + 128
F_X, F_WQ, F_K, F_QGO, C_P, F_V, F_GU, F_HGO, C_Q, F_MIX, C_MX, F_W, C_VEC, C_FIN, F_NON = range(15)
MASK = 0xFFFFF000
SC = 0.08838834764831845 * 1.4426950408889634
def f2u(x): return struct.unpack("<I", struct.pack("<f", x))[0]
TA = [0x9B1, 0x3C5, 0x6A7, 0xD2B]; TB = [0x1F3, 0x8A5, 0x417, 0xC69]

class RA:
    def __init__(self, start): self.n = start; self.hi = start
    def __call__(self, k=1, align=1):
        self.n = (self.n + align - 1) // align * align
        r = self.n; self.n += k; self.hi = max(self.hi, self.n); return r

DEF = dict(R=20, qgo=34, hgo=104, idle=7, remap=False, epf=192, cap=200000, qa2=True, cache=True, order='x,wq,K,V,gu,wo,wd', gu_mid=False, fst='sc1', fld='sc1', fcm=False)

def gen(stamps=False, opts=None):
    o = dict(DEF)
    if opts: o.update(opts)
    cap = o["cap"]
    a = Asm()
    V = RA(1)
    vr = lambda b, n: f"v[{b}:{b+n-1}]"
    srd = lambda b: f"s[{b}:{b+3}]"
    sX, sK, sV, sWQ, sWO, sWG, sWU, sWD, sOUT, sWS = 4, 8, 12, 16, 20, 24, 28, 32, 36, 40
    sBB = 3
    sG, sC, sW, sN = 44, 45, 46, 47
    sT = [48, 49, 50, 51]
    sKV, sP = 52, 53
    sA, sB, sCc, sD = 54, 55, 56, 57
    sCap, sB8 = 58, 59
    sE, sF = 60, 61
    sT3q, sMix = 62, 63
    ST0 = 64
    names = {"att": [], "com": []}
    def stamp(role, name):
        if stamps is True:
            i = len(names[role]); names[role].append(name)
            a(f"s_memrealtime s[{ST0+2*i}:{ST0+2*i+1}]")
    def setexec(lo, hi): a(f"s_mov_b32 exec_lo, {lo:#x}\ns_mov_b32 exec_hi, {hi:#x}")
    def fullexec(): a("s_mov_b64 exec, -1")
    def tags():
        for i in range(4):
            a(f"s_mul_i32 s{sT[i]}, s{sN}, {TA[i]:#x}\ns_add_u32 s{sT[i]}, s{sT[i]}, {TB[i]:#x}\ns_and_b32 s{sT[i]}, s{sT[i]}, 0xfff")
    vL, vG, vI, vMASK, vT0, vT1, vT2, vT3, vFL, vOne1 = [V() for _ in range(10)]
    def check(regs):
        for k, r in enumerate(regs): a(f"v_xor_b32 v{r}, s{sT[k&3]}, v{r}")
        rs = list(regs); acc = [vT0, vT1]; first = [True, True]; k = 0
        while rs:
            t = acc[k]
            if first[k]:
                a(f"v_or3_b32 v{t}, v{rs[0]}, v{rs[1]}, v{rs[2]}"); rs = rs[3:]; first[k] = False
            elif len(rs) >= 2: a(f"v_or3_b32 v{t}, v{t}, v{rs[0]}, v{rs[1]}"); rs = rs[2:]
            else: a(f"v_or_b32 v{t}, v{t}, v{rs[0]}"); rs = rs[1:]
            k ^= 1
        a(f"v_or_b32 v{vT0}, v{vT0}, v{vT1}\nv_and_b32 v{vT0}, 0xfff, v{vT0}\nv_cmp_ne_u32 vcc, 0, v{vT0}")
    def check_q(regs):
        for k, r in enumerate(regs): a(f"v_xor_b32 v{r}, s{sT3q if (k & 3) == 3 else sT[k&3]}, v{r}")
        a(f"""
        v_or3_b32 v{vT0}, v{regs[0]}, v{regs[1]}, v{regs[2]}
        v_or_b32 v{vT1}, v{regs[3]}, v{regs[7]}
        v_or3_b32 v{vT0}, v{vT0}, v{regs[4]}, v{regs[5]}
        v_and_b32 v{vT2}, 0xff0, v{vT1}
        v_or3_b32 v{vT0}, v{vT0}, v{regs[6]}, v{vT2}
        v_and_b32 v{vT0}, 0xfff, v{vT0}
        v_cmp_ne_u32 vcc, 0, v{vT0}
        """)
    uid = [0]
    def poll(reissue, regs, pre_check=None, chk=None):
        u = uid[0]; uid[0] += 1
        if pre_check: pre_check()
        a(f"s_mov_b32 s{sCap}, {cap}\ns_waitcnt vmcnt(0)\ns_branch L_chk{u}\nL_poll{u}:")
        reissue()
        a(f"s_waitcnt vmcnt(0)\nL_chk{u}:")
        (chk or check)(regs)
        a(f"""
        s_mov_b64 exec, vcc
        s_cbranch_execz L_ok{u}
        s_sub_u32 s{sCap}, s{sCap}, 1
        s_cbranch_scc0 L_poll{u}
        L_ok{u}:
        s_mov_b64 exec, -1
        """)
    def waitflag(idx, val=1, mix=False):
        u = uid[0]; uid[0] += 1
        a(f"s_mov_b32 s{sCap}, {cap*8}\nL_fw{u}:")
        if mix:
            a(f"ds_read_b64 v[{vT2p}:{vT2p+1}], v{vFL} offset:{4*idx}\ns_waitcnt lgkmcnt(0)\nv_readfirstlane_b32 s{sP}, v{vT2p}\nv_readfirstlane_b32 s{sMix}, v{vT2p+1}")
        else:
            a(f"ds_read_b32 v{vT3}, v{vFL} offset:{4*idx}\ns_waitcnt lgkmcnt(0)\nv_readfirstlane_b32 s{sP}, v{vT3}")
        a(f"""
        s_cmp_ge_u32 s{sP}, {val}
        s_cbranch_scc1 L_fd{u}
        s_sub_u32 s{sCap}, s{sCap}, 1
        s_cbranch_scc0 L_fw{u}
        L_fd{u}:
        """)
    sKnown = {F_V: 96, F_GU: 97, F_HGO: 98}
    def waitgroup(idx, val=1):
        if not o["cache"]: return waitflag(idx, val)
        u = uid[0]; uid[0] += 1
        if idx in sKnown: a(f"s_cmp_ge_u32 s{sKnown[idx]}, 1\ns_cbranch_scc1 L_fd{u}")
        a(f"s_mov_b32 s{sCap}, {cap*8}\nL_fw{u}:\nds_read_b128 {vr(vFg4,4)}, v{vFL} offset:{4*C_P}\ns_waitcnt lgkmcnt(0)")
        for f in (C_P, F_V, F_GU, F_HGO):
            if f >= idx: a(f"v_readfirstlane_b32 s{sKnown.get(f, sP)}, v{vFg4 + f - C_P}")
        a(f"""
        s_cmp_ge_u32 s{sKnown.get(idx, sP)}, {val}
        s_cbranch_scc1 L_fd{u}
        s_sub_u32 s{sCap}, s{sCap}, 1
        s_cbranch_scc0 L_fw{u}
        L_fd{u}:
        """)
    def setflag(idx): a(f"s_mov_b64 exec, 1\nds_write_b32 v{vFL}, v{vOne1} offset:{4*idx}\ns_mov_b64 exec, -1")
    def addflag(idx): a(f"s_mov_b64 exec, 1\nds_add_u32 v{vFL}, v{vOne1} offset:{4*idx}\ns_mov_b64 exec, -1")
    def scoped_store(text, tag):
        a(f"""
        s_cmp_lg_u32 s{sMix}, 0
        s_cbranch_scc1 L_far_{tag}
        {text}
        s_branch L_done_{tag}
        L_far_{tag}:
        {text} sc1
        L_done_{tag}:
        """)
    def lane_setup():
        a(f"""
        v_lshrrev_b32 v{vG}, 4, v{vL}
        v_and_b32 v{vI}, 15, v{vL}
        v_mov_b32 v{vFL}, {L_FLG}
        v_mov_b32 v{vOne1}, 1
        s_lshl_b32 s{sB8}, s{sG}, 5
        s_add_u32 s{sB8}, s{sB8}, s{sC}
        s_cmp_gt_u32 s{sG}, {o["idle"]}
        s_cselect_b32 s{sBB}, 1, 0
        s_sub_u32 s{sBB}, s{sG}, s{sBB}
        s_cmp_eq_u32 s{sG}, {o["idle"]}
        s_cselect_b32 s{sBB}, 7, s{sBB}
        s_lshl_b32 s{sBB}, s{sBB}, 5
        s_add_u32 s{sBB}, s{sBB}, s{sC}
        """)

    a(f"""
    s_cmp_ge_u32 s2, 256
    s_cbranch_scc1 L_end
    s_load_dwordx2 s[{sX}:{sX+1}], s[0:1], 0
    s_load_dwordx2 s[{sWQ}:{sWQ+1}], s[0:1], 24
    s_load_dwordx2 s[{sK}:{sK+1}], s[0:1], 8
    s_load_dwordx2 s[{sV}:{sV+1}], s[0:1], 16
    s_load_dwordx2 s[{sWS}:{sWS+1}], s[0:1], 88
    """)
    if stamps: a(f"s_memrealtime s[{ST0}:{ST0+1}]"); names["att"].append("start"); names["com"].append("start")
    a(f"""
    v_lshrrev_b32 v{vT0}, 6, v0
    {f"s_lshr_b32 s{sG}, s2, 5" if o["remap"] else f"s_and_b32 s{sG}, s2, 7"}
    v_readfirstlane_b32 s{sW}, v{vT0}
    {f"s_and_b32 s{sC}, s2, 31" if o["remap"] else f"s_lshr_b32 s{sC}, s2, 3"}
    v_and_b32 v{vL}, 63, v0
    s_cmp_eq_u32 s{sW}, 0
    s_cbranch_scc1 L_loader
    s_sub_u32 s{sW}, s{sW}, 1
    s_getpc_b64 s[92:93]
    L_pce:
    s_lshl_b32 s94, s{sC}, 2
    s_add_u32 s94, s94, s{sW}
    s_lshl_b32 s94, s94, 6
    s_add_u32 s94, s94, {o["epf"]}
    s_min_u32 s94, s94, L_end-L_pce
    s_load_dword s95, s[92:93], s94
    s_branch L_compute
    """)
    mark = V.n

    vXo = V(); vWQo = V(); vGUo = V(); vKo = [V() for _ in range(4)]; vVo = [V() for _ in range(2)]
    a(f"""
    L_loader:
    s_setprio 3
    s_mov_b32 s{sW}, 4
    s_mov_b32 s{sX+2}, 0x400
    s_mov_b32 s{sX+3}, 0x20000
    s_mov_b32 s{sWQ+2}, 0x400000
    s_mov_b32 s{sWQ+3}, 0x20000
    v_lshlrev_b32 v{vXo}, 4, v{vL}
    v_lshrrev_b32 v{vT1}, 3, v{vL}
    v_and_b32 v{vT0}, 7, v{vL}
    v_and_b32 v{vT2}, 6, v{vT1}
    v_xor_b32 v{vT0}, v{vT0}, v{vT2}
    v_lshlrev_b32 v{vT0}, 4, v{vT0}
    v_lshl_add_u32 v{vWQo}, v{vT1}, 13, v{vT0}
    s_lshr_b32 s{sA}, s{sC}, 3
    s_lshl_b32 s{sB}, s{sA}, 20
    s_lshl_b32 s{sA}, s{sG}, 10
    s_add_u32 s{sB}, s{sB}, s{sA}
    s_and_b32 s{sA}, s{sC}, 7
    s_lshl_b32 s{sA}, s{sA}, 7
    s_add_u32 s{sB}, s{sB}, s{sA}
    s_mov_b32 m0, {L_X}
    s_waitcnt lgkmcnt(0)
    ; x, then the 128 x 64 tile of wq (8 rows x 128 B per request, 16-byte pieces xor-swizzled for the transposing reads)
    buffer_load_dwordx4 v{vXo}, {srd(sX)}, 0 offen lds
    s_mov_b32 m0, {L_WQ}
    s_add_u32 s{sA}, s{sB}, {65536-1024}
    s_add_u32 s{sCc}, s{sB}, {2*(65536-1024)}
    s_add_u32 s{sD}, s{sB}, {3*(65536-1024)}
    s_mov_b32 s{sE}, 4
    L_wqloop:
    buffer_load_dwordx4 v{vWQo}, {srd(sWQ)}, s{sB} offen nt lds
    buffer_load_dwordx4 v{vWQo}, {srd(sWQ)}, s{sA} offen offset:1024 nt lds
    buffer_load_dwordx4 v{vWQo}, {srd(sWQ)}, s{sCc} offen offset:2048 nt lds
    buffer_load_dwordx4 v{vWQo}, {srd(sWQ)}, s{sD} offen offset:3072 nt lds
    s_add_u32 m0, m0, 4096
    s_add_u32 s{sB}, s{sB}, 0x40000
    s_add_u32 s{sA}, s{sA}, 0x40000
    s_add_u32 s{sCc}, s{sCc}, 0x40000
    s_add_u32 s{sD}, s{sD}, 0x40000
    s_sub_u32 s{sE}, s{sE}, 1
    s_cmp_lg_u32 s{sE}, 0
    s_cbranch_scc1 L_wqloop
    s_load_dwordx2 s[{sWO}:{sWO+1}], s[0:1], 32
    s_load_dwordx2 s[{sWG}:{sWG+1}], s[0:1], 48
    s_load_dwordx2 s[{sWU}:{sWU+1}], s[0:1], 56
    s_load_dwordx2 s[{sWD}:{sWD+1}], s[0:1], 64
    s_load_dwordx2 s[{sOUT}:{sOUT+1}], s[0:1], 72
    """)
    for b, size in ((sK, 1 << 27), (sV, 1 << 27), (sWS, WS_SIZE), (sWO, 4 << 20), (sOUT, 1024)):
        a(f"s_mov_b32 s{b+2}, {size:#x}\ns_mov_b32 s{b+3}, 0x20000")
    lane_setup()
    tot = dict(x=1, wq=16, K=32, V=32, gu=16, wo=16, wd=8); cur = dict.fromkeys(tot, 0); seq = []
    for item in o["order"].split(","):
        nm, cnt = (item.split(":") + [None])[:2]
        for _ in range(int(cnt) if cnt else tot[nm] - cur[nm]): seq.append((nm, cur[nm])); cur[nm] += 1
    assert cur == tot and [x[0] for x in seq[:18]] == ["x"] + ["wq"] * 16 + ["K"]
    last = {nm: max(i for i, x in enumerate(seq) if x[0] == nm) + 1 for nm in tot}
    assert last["gu"] <= min(i for i, x in enumerate(seq) if x[0] == "wo") < last["wo"] <= min(i for i, x in enumerate(seq) if x[0] == "wd")
    events = sorted([(1, F_X), (17, F_WQ), (last["K"], F_K), (last["V"], F_V), (last["gu"], F_GU), (o["qgo"], F_QGO), (o["hgo"], F_HGO)])
    fname = {F_X: "x", F_WQ: "wq", F_K: "K", F_V: "V", F_GU: "gu", F_QGO: "qgo", F_HGO: "hgo"}
    state = dict(m0=None)
    sWQs, sGUs, sWOs, sWDs = sB, sD, sE, sF
    def setup(nm):
        if nm == "K":
            a(f"""
            s_lshl_b32 s{sKV}, s{sG}, 24
            s_lshl_b32 s{sCc}, s{sC}, 12
            s_add_u32 s{sKV}, s{sKV}, s{sCc}
            s_add_u32 s{sKV}, s{sKV}, 0xF00000
            v_xor_b32 v{vT0}, v{vI}, v{vG}
            v_lshlrev_b32 v{vT0}, 4, v{vT0}
            v_lshl_add_u32 v{vKo[0]}, v{vG}, 8, v{vT0}
            v_xor_b32 v{vKo[1]}, 64, v{vKo[0]}
            v_xor_b32 v{vKo[2]}, 0x80, v{vKo[0]}
            v_xor_b32 v{vKo[3]}, 0xc0, v{vKo[0]}
            """)
        if nm == "V":
            a(f"""
            v_lshlrev_b32 v{vT1}, 1, v{vG}
            v_xor_b32 v{vT0}, v{vI}, v{vT1}
            v_lshlrev_b32 v{vT0}, 4, v{vT0}
            v_lshl_add_u32 v{vVo[0]}, v{vG}, 8, v{vT0}
            v_xor_b32 v{vVo[1]}, 0x80, v{vVo[0]}
            """)
        if nm == "gu":
            a(f"""
            s_waitcnt lgkmcnt(0)
            s_cmp_eq_u32 s{sG}, {o['idle']}
            s_cselect_b32 s{sWG+2}, 0, {512*1792*2:#x}
            s_mov_b32 s{sWU+2}, s{sWG+2}
            s_mov_b32 s{sWD+2}, s{sWG+2}
            s_mov_b32 s{sWG+3}, 0x20000
            s_mov_b32 s{sWU+3}, 0x20000
            s_mov_b32 s{sWD+3}, 0x20000
            v_lshrrev_b32 v{vT1}, 3, v{vL}
            v_and_b32 v{vT0}, 7, v{vL}
            v_and_b32 v{vT2}, 6, v{vT1}
            v_xor_b32 v{vT0}, v{vT0}, v{vT2}
            v_lshlrev_b32 v{vT0}, 4, v{vT0}
            v_mul_u32_u24 v{vGUo}, 3584, v{vT1}
            v_add_u32 v{vGUo}, v{vGUo}, v{vT0}
            v_lshl_add_u32 v{vWQo}, v{vT1}, 10, v{vT0}
            s_and_b32 s{sGUs}, s{sC}, 7
            s_mul_i32 s{sGUs}, s{sGUs}, {64*3584}
            s_lshr_b32 s{sCc}, s{sBB}, 3
            s_lshl_b32 s{sCc}, s{sCc}, 7
            s_add_u32 s{sGUs}, s{sGUs}, s{sCc}
            """)
        if nm == "wo":
            a(f"""
            s_lshl_b32 s{sWOs}, s{sG}, 19
            s_lshr_b32 s{sCc}, s{sC}, 3
            s_lshl_b32 s{sCc}, s{sCc}, 17
            s_add_u32 s{sWOs}, s{sWOs}, s{sCc}
            s_and_b32 s{sCc}, s{sC}, 7
            s_lshl_b32 s{sCc}, s{sCc}, 7
            s_add_u32 s{sWOs}, s{sWOs}, s{sCc}
            s_lshr_b32 s{sWDs}, s{sBB}, 3
            s_lshl_b32 s{sWDs}, s{sWDs}, 16
            s_add_u32 s{sWDs}, s{sWDs}, s{sCc}
            """)
    def emit(nm, i):
        if i == 0: setup(nm)
        q, r = i >> 2, i & 3
        ldsbase = {"K": L_K, "V": L_V, "gu": L_WG, "wo": L_WO, "wd": L_WD}[nm] + q * 4096
        if state["m0"] != ldsbase: a(f"s_mov_b32 m0, {ldsbase}"); state["m0"] = ldsbase
        if nm in ("K", "V"):
            if state.get("kv") != (nm, q): a(f"s_add_u32 s{sCc}, s{sKV}, {q*131072}")
            state["kv"] = (nm, q)
            a(f"buffer_load_dwordx4 v{vKo[r] if nm == 'K' else vVo[i & 1]}, {srd(sK if nm == 'K' else sV)}, s{sCc} offen offset:{r*1024} nt lds")
        elif nm == "gu":
            state["kv"] = None
            a(f"s_add_u32 s{sCc}, s{sGUs}, {(i & 7)*8*3584 - r*1024}")
            a(f"buffer_load_dwordx4 v{vGUo}, {srd(sWG if i < 8 else sWU)}, s{sCc} offen offset:{r*1024} nt lds")
        else:
            a(f"s_add_u32 s{sCc}, s{sWOs if nm == 'wo' else sWDs}, {i*8192 - r*1024}")
            a(f"buffer_load_dwordx4 v{vWQo}, {srd(sWO if nm == 'wo' else sWD)}, s{sCc} offen offset:{r*1024} nt lds")
    R = o["R"]; assert R >= 18
    pend = list(events); barrier_done = False
    for n, (nm, i) in enumerate(seq):
        if n < 17: continue
        if n >= R:
            if not barrier_done: a("s_barrier"); barrier_done = True
            a(f"s_waitcnt vmcnt({R-1})")
            while pend and n - R + 1 >= pend[0][0]:
                ev = pend.pop(0); setflag(ev[1]); stamp("com", fname[ev[1]])
        emit(nm, i)
    total = len(seq)
    stamp("com", "issued")
    vFg = V(); vXw = V(); vXc = V(); vF1 = V(8, 4)
    a(f"""
    {f"v_lshlrev_b32 v{vFg}, 5, v{vL}" if o["fcm"] else f'''v_lshrrev_b32 v{vT0}, 1, v{vL}
    v_and_b32 v{vT1}, 7, v{vT0}
    v_lshrrev_b32 v{vT0}, 3, v{vT0}
    v_lshl_add_u32 v{vT0}, v{vT0}, 6, v{vT1}
    v_lshlrev_b32 v{vFg}, 8, v{vT0}'''}
    v_and_b32 v{vT1}, 1, v{vL}
    {"" if o["fcm"] else f"v_lshl_add_u32 v{vFg}, v{vT1}, 5, v{vFg}"}
    v_lshlrev_b32 v{vXw}, 4, v{vT1}
    v_lshrrev_b32 v{vT0}, 1, v{vG}
    v_lshl_add_u32 v{vXw}, v{vT0}, 3, v{vXw}
    v_and_b32 v{vT0}, 1, v{vG}
    v_lshl_add_u32 v{vXw}, v{vT0}, 2, v{vXw}
    s_and_b32 s{sA}, s{sC}, 7
    s_lshr_b32 s{sB}, s{sC}, 3
    s_lshl_b32 s{sD}, s{sA}, 7
    s_lshl_b32 s{sE}, s{sB}, 5
    s_add_u32 s{sD}, s{sD}, s{sE}
    v_add_u32 v{vXw}, s{sD}, v{vXw}
    s_lshl_b32 s{sD}, s{sA}, {13 if o["fcm"] else 11}
    s_lshl_b32 s{sE}, s{sB}, {11 if o["fcm"] else 6}
    s_add_u32 s{sD}, s{sD}, s{sE}
    s_add_u32 s{sD}, s{sD}, {WS_FIN}
    """)
    for upto, fl in pend:
        a(f"s_waitcnt vmcnt({total-upto})"); setflag(fl); stamp("com", fname[fl])
    a("s_waitcnt vmcnt(0)")
    setflag(F_W)
    stamp("com", "wland")
    a(f"""
    s_cmp_lg_u32 s{sA}, s{sG}
    s_cbranch_scc1 L_fin
    v_add_u32 v{vT0}, {L_X}, v{vXw}
    ds_read_b32 v{vXc}, v{vT0}
    """)
    waitflag(C_FIN, 4)
    a(f"ds_read_b32 v{vT2}, v{vFL} offset:{4*F_NON}\ns_waitcnt lgkmcnt(0)\nv_readfirstlane_b32 s{sN}, v{vT2}")
    def fissue():
        a(f"buffer_load_dwordx4 {vr(vF1,4)}, v{vFg}, {srd(sWS)}, s{sD} offen {o['fld']}")
        a(f"buffer_load_dwordx4 {vr(vF1+4,4)}, v{vFg}, {srd(sWS)}, s{sD} offen offset:16 {o['fld']}")
    fissue()
    poll(fissue, list(range(vF1, vF1 + 8)), pre_check=tags)
    stamp("com", "fok")
    for e in range(4): a(f"v_permlane32_swap_b32 v{vF1+e}, v{vF1+4+e}")
    for e in range(4): a(f"v_add_f32 v{vF1+e}, v{vF1+e}, v{vF1+4+e}")
    a(f"""
    v_permlane16_swap_b32 v{vF1}, v{vF1+2}
    v_permlane16_swap_b32 v{vF1+1}, v{vF1+3}
    v_add_f32 v{vF1}, v{vF1}, v{vF1+2}
    v_add_f32 v{vF1+1}, v{vF1+1}, v{vF1+3}
    """)
    for rot in (8, 4, 2):
        for x in (vF1, vF1 + 1):
            a(f"v_add_f32_dpp v{x}, v{x}, v{x} row_ror:{rot} row_mask:0xf bank_mask:0xf")
    a(f"""
    v_lshlrev_b32 v{vT0}, 16, v{vXc}
    v_and_b32 v{vT1}, 0xffff0000, v{vXc}
    v_add_f32 v{vF1}, v{vF1}, v{vT0}
    v_add_f32 v{vF1+1}, v{vF1+1}, v{vT1}
    v_cvt_pk_bf16_f32 v{vF1}, v{vF1}, v{vF1+1}
    """)
    setexec(0x00030003, 0x00030003)
    a(f"""
    buffer_store_dword v{vF1}, v{vXw}, {srd(sOUT)}, 0 offen
    ; workgroup 0 has now heard from every group, hence every workgroup has read the nonce: advance it
    s_cmp_lg_u32 s{sB8}, 0
    s_cbranch_scc1 L_fin
    s_add_u32 s{sA}, s{sN}, 1
    s_mov_b64 exec, 1
    v_mov_b32 v{vT0}, s{sA}
    v_mov_b32 v{vT1}, {WS_NONCE}
    buffer_store_dword v{vT0}, v{vT1}, {srd(sWS)}, 0 offen sc1
    s_branch L_fin
    """)

    V.n = mark
    a("L_compute:")
    lane_setup()
    a(f"""
    v_mov_b32 v{vT0}, 0
    v_and_b32 v{vT1}, 31, v{vL}
    v_lshlrev_b32 v{vT1}, 2, v{vT1}
    v_add_u32 v{vT1}, {L_FLG}, v{vT1}
    ds_write_b32 v{vT1}, v{vT0}
    v_mov_b32 v{vMASK}, {MASK:#x}
    s_mov_b32 s{sWS+2}, {WS_SIZE:#x}
    s_mov_b32 s{sWS+3}, 0x20000
    s_waitcnt lgkmcnt(0)
    s_load_dword s{sN}, s[{sWS}:{sWS+1}], {WS_NONCE}
    s_barrier
    """)
    vXo = V(); vTRa = V(); vXNa = V(); vQg = V(); vQw = V(); vQr = V(); vMXr = V(); vMXw = V(); vPr = V(); vPw = V(); vOa = V()
    vKa = V(4); vVa = V(2); vGUp = V(); vT2p = V(2, 2); vFg4 = V(4, 4)
    a(f"""
    v_lshlrev_b32 v{vXo}, 4, v{vL}
    v_lshrrev_b32 v{vT0}, 2, v{vL}
    v_lshlrev_b32 v{vTRa}, 7, v{vT0}
    v_lshrrev_b32 v{vT1}, 1, v{vT0}
    v_and_b32 v{vT1}, 3, v{vT1}
    v_xor_b32 v{vT1}, s{sW}, v{vT1}
    v_lshl_add_u32 v{vTRa}, v{vT1}, 5, v{vTRa}
    v_and_b32 v{vT1}, 3, v{vL}
    v_lshl_add_u32 v{vTRa}, v{vT1}, 3, v{vTRa}
    v_add_u32 v{vTRa}, {L_WQ}, v{vTRa}
    s_lshr_b32 s{sA}, s{sC}, 3
    s_lshl_b32 s{sA}, s{sA}, 8
    s_add_u32 s{sA}, s{sA}, {L_XN}
    v_lshl_add_u32 v{vXNa}, v{vG}, 3, s{sA}
    v_lshrrev_b32 v{vT0}, 5, v{vL}
    v_and_b32 v{vT1}, 31, v{vL}
    v_lshlrev_b32 v{vT2}, 4, v{vT1}
    v_lshl_add_u32 v{vQg}, v{vT0}, 12, v{vT2}
    v_lshlrev_b32 v{vT1}, 3, v{vT1}
    v_lshl_add_u32 v{vQw}, v{vT0}, 2, v{vT1}
    s_mul_i32 s{sA}, s{sW}, 320
    s_add_u32 s{sA}, s{sA}, {L_Q}
    v_add_u32 v{vQw}, s{sA}, v{vQw}
    v_and_b32 v{vT0}, 3, v{vI}
    v_mul_u32_u24 v{vQr}, 320, v{vT0}
    v_lshl_add_u32 v{vQr}, v{vG}, 4, v{vQr}
    v_add_u32 v{vQr}, {L_Q}, v{vQr}
    v_lshlrev_b32 v{vMXr}, 4, v{vT0}
    v_add_u32 v{vMXr}, {L_MX}, v{vMXr}
    s_lshl_b32 s{sA}, s{sW}, 2
    v_add_u32 v{vMXw}, s{sA}, v{vMXr}
    v_lshlrev_b32 v{vPr}, 4, v{vT0}
    v_lshl_add_u32 v{vPr}, v{vG}, 6, v{vPr}
    v_add_u32 v{vPr}, {L_P}, v{vPr}
    s_lshl_b32 s{sA}, s{sW}, 8
    v_add_u32 v{vPw}, s{sA}, v{vPr}
    v_lshlrev_b32 v{vOa}, 9, v{vT0}
    v_lshl_add_u32 v{vOa}, v{vG}, 4, v{vOa}
    v_lshrrev_b32 v{vT1}, 2, v{vI}
    v_and_b32 v{vT1}, 1, v{vT1}
    v_lshl_add_u32 v{vOa}, v{vT1}, 6, v{vOa}
    s_lshl_b32 s{sA}, s{sW}, 7
    v_add_u32 v{vOa}, s{sA}, v{vOa}
    s_lshl_b32 s{sE}, s{sW}, 13
    v_xor_b32 v{vT0}, v{vG}, v{vI}
    v_lshlrev_b32 v{vT0}, 4, v{vT0}
    v_lshl_add_u32 v{vKa}, v{vI}, 8, v{vT0}
    v_add_u32 v{vKa}, s{sE}, v{vKa}
    """)
    for t in range(1, 4): a(f"v_xor_b32 v{vKa+t}, {t<<6:#x}, v{vKa}")
    a(f"""
    v_lshrrev_b32 v{vT1}, 2, v{vL}
    v_lshlrev_b32 v{vVa}, 8, v{vT1}
    v_and_b32 v{vT1}, 7, v{vT1}
    s_lshl_b32 s{sA}, s{sW}, 1
    v_xor_b32 v{vT1}, s{sA}, v{vT1}
    v_lshl_add_u32 v{vVa}, v{vT1}, 5, v{vVa}
    v_and_b32 v{vT1}, 3, v{vL}
    v_lshl_add_u32 v{vVa}, v{vT1}, 3, v{vVa}
    v_add_u32 v{vVa}, {L_V}, v{vVa}
    v_xor_b32 v{vVa+1}, 32, v{vVa}
    v_lshlrev_b32 v{vGUp}, 5, v{vG}
    v_lshl_add_u32 v{vGUp}, v{vI}, 4, v{vGUp}
    """)
    vA = V(16, 4); vB = V(16, 4); vAcc = V(4, 4); vAcc2 = V(4, 4); vPub = V(4, 4)
    vX = vB; vE = vA; vD = vA + 8
    waitflag(F_X)
    stamp("att", "xarr")
    a(f"; ---- LayerNorm\nv_add_u32 v{vT0}, {L_X}, v{vXo}\nds_read_b128 {vr(vX,4)}, v{vT0}\ns_waitcnt lgkmcnt(0)")
    for k in range(4):
        a(f"v_lshlrev_b32 v{vE+2*k}, 16, v{vX+k}\nv_and_b32 v{vE+2*k+1}, 0xffff0000, v{vX+k}")
    a(f"v_readlane_b32 s{sA}, v{vE}, 0")
    for k in range(8): a(f"v_subrev_f32 v{vD+k}, s{sA}, v{vE+k}")
    a(f"""
    v_add_f32 v{vT0}, v{vD}, v{vD+1}
    v_mul_f32 v{vT1}, v{vD}, v{vD}
    v_add_f32 v{vT2}, v{vD+2}, v{vD+3}
    v_fmac_f32 v{vT1}, v{vD+1}, v{vD+1}
    v_add_f32 v{vT3}, v{vD+4}, v{vD+5}
    v_fmac_f32 v{vT1}, v{vD+2}, v{vD+2}
    v_add_f32 v{vT0}, v{vT0}, v{vT2}
    v_fmac_f32 v{vT1}, v{vD+3}, v{vD+3}
    v_add_f32 v{vT2}, v{vD+6}, v{vD+7}
    v_fmac_f32 v{vT1}, v{vD+4}, v{vD+4}
    v_add_f32 v{vT3}, v{vT3}, v{vT2}
    v_fmac_f32 v{vT1}, v{vD+5}, v{vD+5}
    v_add_f32 v{vT0}, v{vT0}, v{vT3}
    v_fmac_f32 v{vT1}, v{vD+6}, v{vD+6}
    v_fmac_f32 v{vT1}, v{vD+7}, v{vD+7}
    """)
    for mod in ("quad_perm:[1,0,3,2] row_mask:0xf", "quad_perm:[2,3,0,1] row_mask:0xf", "row_half_mirror row_mask:0xf",
                "row_mirror row_mask:0xf", "row_bcast:15 row_mask:0xa", "row_bcast:31 row_mask:0xc"):
        for v in (vT0, vT1): a(f"v_add_f32_dpp v{v}, v{v}, v{v} {mod} bank_mask:0xf")
    a(f"""
    v_readlane_b32 s{sB}, v{vT0}, 63
    v_readlane_b32 s{sCc}, v{vT1}, 63
    v_mov_b32 v{vT2}, {f2u(1/512):#x}
    v_mul_f32 v{vT0}, s{sB}, v{vT2}
    v_mul_f32 v{vT1}, s{sCc}, v{vT2}
    v_fma_f32 v{vT1}, -v{vT0}, v{vT0}, v{vT1}
    v_add_f32 v{vT0}, s{sA}, v{vT0}
    v_max_f32 v{vT1}, 0, v{vT1}
    v_cvt_pk_bf16_f32 v{vT0}, v{vT0}, v{vT1}
    v_and_b32 v{vT2}, 0xffff0000, v{vT0}
    v_lshlrev_b32 v{vT1}, 16, v{vT0}
    v_add_f32 v{vT2}, {f2u(1e-5):#x}, v{vT2}
    """)
    for k in range(8): a(f"v_sub_f32 v{vD+k}, v{vE+k}, v{vT1}")
    a(f"v_cvt_pk_bf16_f32 v{vT2}, v{vT2}, v{vT2}\nv_and_b32 v{vT2}, 0xffff0000, v{vT2}\nv_sqrt_f32 v{vT2}, v{vT2}")
    for k in range(4): a(f"v_cvt_pk_bf16_f32 v{vE+k}, v{vD+2*k}, v{vD+2*k+1}")
    a(f"v_cvt_pk_bf16_f32 v{vT2}, v{vT2}, v{vT2}\nv_and_b32 v{vT2}, 0xffff0000, v{vT2}\nv_rcp_f32 v{vT2}, v{vT2}")
    for k in range(4): a(f"v_lshlrev_b32 v{vD+2*k}, 16, v{vE+k}\nv_and_b32 v{vD+2*k+1}, 0xffff0000, v{vE+k}")
    for k in range(8): a(f"v_mul_f32 v{vD+k}, v{vD+k}, v{vT2}")
    for k in range(4): a(f"v_cvt_pk_bf16_f32 v{vE+k}, v{vD+2*k}, v{vD+2*k+1}")
    a(f"v_add_u32 v{vT0}, {L_XN}, v{vXo}\nds_write_b128 v{vT0}, {vr(vE,4)}\ns_waitcnt lgkmcnt(0)")
    tags()
    a(f"""
    v_mov_b32 v{vT0}, s{sN}
    s_mov_b64 exec, 1
    ds_write_b32 v{vFL}, v{vT0} offset:{4*F_NON}
    s_mov_b64 exec, -1
    s_getreg_b32 s{sMix}, hwreg(HW_REG_XCC_ID, 0, 4)
    s_and_b32 s{sT3q}, s{sT[3]}, 0xff0
    s_or_b32 s{sT3q}, s{sT3q}, s{sMix}
    """)
    for kk in range(4):
        a(f"ds_read2_b64 {vr(vB+4*kk,4)}, v{vXNa} offset0:{8*kk} offset1:{8*kk+4}")
    a(f"""
    s_lshl_b32 s{sA}, s{sG}, 13
    s_lshr_b32 s{sB}, s{sC}, 3
    s_lshl_b32 s{sB}, s{sB}, 11
    s_add_u32 s{sA}, s{sA}, s{sB}
    s_and_b32 s{sB}, s{sC}, 7
    s_lshl_b32 s{sB}, s{sB}, 8
    s_add_u32 s{sA}, s{sA}, s{sB}
    s_lshl_b32 s{sB}, s{sW}, 6
    s_add_u32 s{sA}, s{sA}, s{sB}
    s_add_u32 s{sA}, s{sA}, {WS_QS}
    s_lshl_b32 s{sD}, s{sG}, 13
    s_lshl_b32 s{sB}, s{sW}, 9
    s_add_u32 s{sD}, s{sD}, s{sB}
    s_add_u32 s{sD}, s{sD}, {WS_QS}
    """)
    waitflag(F_WQ)
    stamp("att", "wqarr")
    a("; ---- q partial over 128 rows of wq")
    for kk in range(4):
        for hh in range(2):
            a(f"ds_read_b64_tr_b16 {vr(vA+4*kk+2*hh,2)}, v{vTRa} offset:{kk*4096+hh*2048}")
    a(f"v_lshlrev_b32 v{vT0}, 4, v{vG}")
    for kk in range(4):
        a(f"s_waitcnt lgkmcnt({2*(3-kk)})")
        a(f"v_mfma_f32_16x16x32_bf16 {vr(vAcc,4)}, {vr(vA+4*kk,4)}, {vr(vB+4*kk,4)}, {'0' if kk==0 else vr(vAcc,4)}")
    for r in range(4): a(f"v_and_or_b32 v{vPub+r}, v{vAcc+r}, v{vMASK}, s{sT3q if r == 3 else sT[r]}")
    setexec(0x00010001, 0x00010001)
    a(f"""
    s_add_u32 s{sB}, s{sA}, {WS_QA-WS_QS}
    buffer_store_dwordx4 {vr(vPub,4)}, v{vT0}, {srd(sWS)}, s{sB} offen
    buffer_store_dwordx4 {vr(vPub,4)}, v{vT0}, {srd(sWS)}, s{sA} offen sc1
    """)
    fullexec()
    stamp("att", "qpub")
    if o.get("dirty"):
        a(f"s_lshl_b32 s{sA}, s{sB8}, 14\ns_lshl_b32 s{sB}, s{sW}, 12\ns_add_u32 s{sA}, s{sA}, s{sB}\ns_add_u32 s{sA}, s{sA}, 0x800000\ns_mov_b32 s{sWS+2}, 0x1000000")
        for k in range(o["dirty"]): a(f"buffer_store_dwordx4 {vr(vPub,4)}, v{vXo}, {srd(sWS)}, s{sA} offen offset:{k*1024}")
    vGa = V(8, 4); vKf = V(32, 4); vVf = V(32, 4); vQf = vB
    vS = V(8, 4); vM = V(2, 2); vM2 = vM + 1; vP = V(4, 4); vOne = V(4, 4); vLs = V(4, 4)
    for k in range(4): a(f"v_mov_b32 v{vOne+k}, 0x3f803f80")
    waitflag(F_QGO)
    stamp("att", "qgo")
    a(f"""
    s_add_u32 s{sB}, s{sD}, {WS_QA-WS_QS}
    buffer_load_dwordx4 {vr(vGa,4)}, v{vQg}, {srd(sWS)}, s{sB} offen sc1
    buffer_load_dwordx4 {vr(vGa+4,4)}, v{vQg}, {srd(sWS)}, s{sB} offen offset:2048 sc1
    """)
    def qgather():
        if o["qa2"]:
            a(f"buffer_load_dwordx4 {vr(vGa,4)}, v{vQg}, {srd(sWS)}, s{sB} offen sc1")
            a(f"buffer_load_dwordx4 {vr(vGa+4,4)}, v{vQg}, {srd(sWS)}, s{sB} offen offset:2048 sc1")
            a(f"s_mov_b32 s{sB}, s{sD}")
            return
        a(f"buffer_load_dwordx4 {vr(vGa,4)}, v{vQg}, {srd(sWS)}, s{sD} offen sc1")
        a(f"buffer_load_dwordx4 {vr(vGa+4,4)}, v{vQg}, {srd(sWS)}, s{sD} offen offset:2048 sc1")
    def kfrags():
        waitflag(F_K)
        for T in range(2):
            for t in range(4):
                a(f"ds_read_b128 {vr(vKf+16*T+4*t,4)}, v{vKa+t} offset:{T*4096}")
    poll(qgather, list(range(vGa, vGa + 8)), pre_check=kfrags, chk=check_q)
    stamp("att", "qok")
    a(f"""
    v_or_b32 v{vT1}, v{vGa+3}, v{vGa+7}
    v_and_b32 v{vT1}, 15, v{vT1}
    v_and_b32 v{vGa+3}, v{vMASK}, v{vGa+3}
    v_cmp_ne_u32 vcc, 0, v{vT1}
    v_and_b32 v{vGa+7}, v{vMASK}, v{vGa+7}
    s_cbranch_vccz L_same
    """)
    setflag(F_MIX)
    a(f"""
    L_same:
    v_add_f32 v{vGa}, v{vGa}, v{vGa+4}
    v_add_f32 v{vGa+1}, v{vGa+1}, v{vGa+5}
    v_add_f32 v{vGa+2}, v{vGa+2}, v{vGa+6}
    v_add_f32 v{vGa+3}, v{vGa+3}, v{vGa+7}
    v_permlane32_swap_b32 v{vGa}, v{vGa+2}
    v_permlane32_swap_b32 v{vGa+1}, v{vGa+3}
    v_add_f32 v{vGa}, v{vGa}, v{vGa+2}
    v_add_f32 v{vGa+1}, v{vGa+1}, v{vGa+3}
    v_cvt_pk_bf16_f32 v{vGa}, v{vGa}, v{vGa+1}
    ds_write_b32 v{vQw}, v{vGa}
    """)
    addflag(C_Q)
    waitflag(C_Q, 4, mix=True)
    a("; ---- scores of this wave's 32 keys, workgroup-wide maximum, softmax numerators")
    for t in range(4): a(f"ds_read_b128 {vr(vQf+4*t,4)}, v{vQr} offset:{t*64}")
    for t in range(4):
        a(f"s_waitcnt lgkmcnt({3-t})")
        for T in range(2):
            a(f"v_mfma_f32_16x16x32_bf16 {vr(vS+4*T,4)}, {vr(vKf+16*T+4*t,4)}, {vr(vQf+4*t,4)}, {'0' if t==0 else vr(vS+4*T,4)}")
    a(f"""
    v_max3_f32 v{vM}, v{vS}, v{vS+1}, v{vS+2}
    v_max3_f32 v{vM2}, v{vS+3}, v{vS+4}, v{vS+5}
    v_max3_f32 v{vM}, v{vM}, v{vS+6}, v{vS+7}
    v_max_f32 v{vM}, v{vM}, v{vM2}
    v_mov_b32 v{vM2}, v{vM}
    v_permlane16_swap_b32 v{vM}, v{vM2}
    v_max_f32 v{vM}, v{vM}, v{vM2}
    v_mov_b32 v{vM2}, v{vM}
    v_permlane32_swap_b32 v{vM}, v{vM2}
    v_max_f32 v{vM}, v{vM}, v{vM2}
    """)
    setexec(0xF, 0)
    a(f"ds_write_b32 v{vMXw}, v{vM}")
    addflag(C_MX)
    a(f"s_mov_b32 s{sA}, {f2u(SC):#x}")
    waitflag(C_MX, 4)
    a(f"""
    ds_read_b128 {vr(vLs,4)}, v{vMXr}
    s_waitcnt lgkmcnt(0)
    v_max3_f32 v{vM}, v{vLs}, v{vLs+1}, v{vLs+2}
    v_max_f32 v{vM}, v{vM}, v{vLs+3}
    v_mul_f32 v{vM}, s{sA}, v{vM}
    v_and_b32 v{vM}, v{vMASK}, v{vM}
    """)
    for e in range(8): a(f"v_fma_f32 v{vS+e}, v{vS+e}, s{sA}, -v{vM}")
    for e in range(8): a(f"v_exp_f32 v{vS+e}, v{vS+e}")
    for k in range(4): a(f"v_cvt_pk_bf16_f32 v{vP+k}, v{vS+2*k}, v{vS+2*k+1}")
    setexec(0x000F000F, 0x000F000F)
    a(f"ds_write_b128 v{vPw}, {vr(vP,4)}")
    def gu_stage():
        a(f"""
        s_and_b32 s{sA}, s{sC}, 7
        s_lshl_b32 s{sA}, s{sA}, 7
        s_add_u32 s{sA}, s{sA}, {L_XN}
        v_lshl_add_u32 v{vXNa}, v{vG}, 3, s{sA}
        v_add_u32 v{vTRa}, {L_WG-L_WQ}, v{vTRa}
        """)
        for kk in range(2):
            a(f"ds_read2_b64 {vr(vB+4*kk,4)}, v{vXNa} offset0:{8*kk} offset1:{8*kk+4}")
        a(f"""
        s_lshl_b32 s{sA}, s{sBB}, 9
        s_lshl_b32 s{sB}, s{sW}, 7
        s_add_u32 s{sA}, s{sA}, s{sB}
        s_add_u32 s{sA}, s{sA}, {WS_GUS}
        """)
        waitgroup(F_GU)
        stamp("att", "guarr")
        for kk in range(2):
            for mat in range(2):
                for hh in range(2):
                    a(f"ds_read_b64_tr_b16 {vr(vA+8*mat+4*kk+2*hh,2)}, v{vTRa} offset:{mat*8192+kk*4096+hh*2048}")
        a(f"v_cmp_eq_u32 vcc, 1, v{vI}")
        for kk in range(2):
            a(f"s_waitcnt lgkmcnt({4*(1-kk)})")
            a(f"v_mfma_f32_16x16x32_bf16 {vr(vAcc,4)}, {vr(vA+4*kk,4)}, {vr(vB+4*kk,4)}, {'0' if kk==0 else vr(vAcc,4)}")
            a(f"v_mfma_f32_16x16x32_bf16 {vr(vAcc2,4)}, {vr(vA+8+4*kk,4)}, {vr(vB+4*kk,4)}, {'0' if kk==0 else vr(vAcc2,4)}")
        a(f"""
        v_cndmask_b32 v{vPub}, v{vAcc}, v{vAcc+2}, vcc
        v_cndmask_b32 v{vPub+1}, v{vAcc+1}, v{vAcc+3}, vcc
        v_cndmask_b32 v{vPub+2}, v{vAcc2}, v{vAcc2+2}, vcc
        v_cndmask_b32 v{vPub+3}, v{vAcc2+1}, v{vAcc2+3}, vcc
        """)
        for e in range(4): a(f"v_and_or_b32 v{vPub+e}, v{vPub+e}, v{vMASK}, s{sT[e]}")
        setexec(0x00030003, 0x00030003)
        scoped_store(f"buffer_store_dwordx4 {vr(vPub,4)}, v{vGUp}, {srd(sWS)}, s{sA} offen", "gu")
        fullexec()
        stamp("att", "gupub")
    addflag(C_P)
    stamp("att", "pwr")
    if o["gu_mid"]: gu_stage()
    a(f"""
    s_lshl_b32 s{sA}, s{sB8}, 11
    s_add_u32 s{sA}, s{sA}, {WS_OPD}
    s_lshl_b32 s{sD}, s{sB8}, 6
    s_add_u32 s{sD}, s{sD}, {WS_OPS}
    v_lshrrev_b32 v{vT0}, 2, v{vI}
    v_and_b32 v{vT0}, 1, v{vT0}
    v_cmp_eq_u32 s[{sE}:{sE+1}], 1, v{vT0}
    v_lshlrev_b32 v{vT2}, 4, v{vI}
    """)
    vPf = vKf; vO = vKf + 16; vSt = vKf + 24
    waitgroup(C_P, 4)
    for sb in range(4): a(f"ds_read_b128 {vr(vPf+4*sb,4)}, v{vPr} offset:{sb*256}")
    for sb in range(4):
        a(f"s_waitcnt lgkmcnt({3-sb})")
        a(f"v_mfma_f32_16x16x32_bf16 {vr(vLs,4)}, {vr(vOne,4)}, {vr(vPf+4*sb,4)}, {'0' if sb==0 else vr(vLs,4)}")
    a(f"""
    s_cmp_lg_u32 s{sW}, 0
    s_cbranch_scc1 L_nostat
    v_or_b32 v{vSt}, s{sT[0]}, v{vM}
    v_and_or_b32 v{vSt+1}, v{vLs}, v{vMASK}, s{sT[1]}
    v_mov_b32 v{vSt+2}, s{sT[2]}
    v_mov_b32 v{vSt+3}, s{sT[3]}
    s_mov_b32 exec_lo, 0xf
    s_mov_b32 exec_hi, 0
    """)
    scoped_store(f"buffer_store_dwordx4 {vr(vSt,4)}, v{vT2}, {srd(sWS)}, s{sD} offen", "st")
    a("s_mov_b64 exec, -1\nL_nostat:")
    waitgroup(F_V)
    stamp("att", "varr")
    for sb in range(4):
        for t in range(2):
            for hh in range(2):
                a(f"ds_read_b64_tr_b16 {vr(vVf+8*sb+4*t+2*hh,2)}, v{vVa+t} offset:{sb*8192+hh*4096}")
    for sb in range(4):
        a(f"s_waitcnt lgkmcnt({4*(3-sb)})")
        for t in range(2):
            a(f"v_mfma_f32_16x16x32_bf16 {vr(vO+4*t,4)}, {vr(vVf+8*sb+4*t,4)}, {vr(vPf+4*sb,4)}, {'0' if sb==0 else vr(vO+4*t,4)}")
    for e in range(4): a(f"v_cndmask_b32 v{vPub+e}, v{vO+e}, v{vO+4+e}, s[{sE}:{sE+1}]")
    for e in range(4): a(f"v_and_or_b32 v{vPub+e}, v{vPub+e}, v{vMASK}, s{sT[e]}")
    setexec(0x00FF00FF, 0x00FF00FF)
    scoped_store(f"buffer_store_dwordx4 {vr(vPub,4)}, v{vOa}, {srd(sWS)}, s{sA} offen", "o")
    fullexec()
    stamp("att", "opub")
    if not o["gu_mid"]: gu_stage()
    vH = vA
    assert vB == vA + 16
    vHd, vHs, vBa, vVw, vVb, vVr, vFo = vKa, vKa + 1, vKa + 2, vKa + 3, vQg, vQw, vQr
    sH0, sH1, sS0, sS1, sBg = sA, sB, sCc, sD, sE
    a(f"""
    v_lshrrev_b32 v{vT0}, 2, v{vL}
    v_and_b32 v{vT1}, 3, v{vL}
    v_lshlrev_b32 v{vHd}, 11, v{vT0}
    v_lshl_add_u32 v{vHd}, v{vT1}, 4, v{vHd}
    v_lshlrev_b32 v{vHs}, 6, v{vT0}
    v_and_b32 v{vT2}, 7, v{vL}
    v_lshlrev_b32 v{vBa}, 9, v{vT2}
    v_lshrrev_b32 v{vT2}, 3, v{vL}
    v_lshl_add_u32 v{vBa}, v{vT2}, 4, v{vBa}
    s_lshl_b32 s{sH0}, s{sG}, 16
    s_lshr_b32 s{sF}, s{sC}, 3
    s_lshl_b32 s{sH1}, s{sF}, 9
    s_add_u32 s{sH0}, s{sH0}, s{sH1}
    s_lshl_b32 s{sH1}, s{sW}, 7
    s_add_u32 s{sH0}, s{sH0}, s{sH1}
    s_add_u32 s{sH0}, s{sH0}, {WS_OPD}
    s_add_u32 s{sH1}, s{sH0}, 32768
    s_lshl_b32 s{sS0}, s{sG}, 11
    s_lshl_b32 s{sS1}, s{sF}, 4
    s_add_u32 s{sS0}, s{sS0}, s{sS1}
    s_add_u32 s{sS0}, s{sS0}, {WS_OPS}
    s_add_u32 s{sS1}, s{sS0}, 1024
    s_and_b32 s{sBg}, s{sBB}, 0xf8
    s_lshl_b32 s{sBg}, s{sBg}, 9
    s_lshl_b32 s{sF}, s{sW}, 7
    s_add_u32 s{sBg}, s{sBg}, s{sF}
    s_add_u32 s{sBg}, s{sBg}, {WS_GUS}
    """)
    def hissue():
        a(f"buffer_load_dwordx4 {vr(vH+16,4)}, v{vHs}, {srd(sWS)}, s{sS0} offen sc1")
        a(f"buffer_load_dwordx4 {vr(vH+20,4)}, v{vHs}, {srd(sWS)}, s{sS1} offen sc1")
        a(f"buffer_load_dwordx4 {vr(vH,4)}, v{vHd}, {srd(sWS)}, s{sH0} offen sc1")
        a(f"buffer_load_dwordx4 {vr(vH+4,4)}, v{vHd}, {srd(sWS)}, s{sH0} offen offset:64 sc1")
        a(f"buffer_load_dwordx4 {vr(vH+8,4)}, v{vHd}, {srd(sWS)}, s{sH1} offen sc1")
        a(f"buffer_load_dwordx4 {vr(vH+12,4)}, v{vHd}, {srd(sWS)}, s{sH1} offen offset:64 sc1")
        a(f"buffer_load_dwordx4 {vr(vH+24,4)}, v{vBa}, {srd(sWS)}, s{sBg} offen sc1")
    waitgroup(F_HGO)
    hissue()
    vW = vVf; vBf = vKf
    def hpre():
        a(f"""
        v_lshrrev_b32 v{vT0}, 1, v{vG}
        v_lshlrev_b32 v{vVw}, 5, v{vT0}
        v_and_b32 v{vT0}, 3, v{vL}
        v_lshl_add_u32 v{vVw}, v{vT0}, 3, v{vVw}
        v_and_b32 v{vT0}, 1, v{vG}
        v_lshl_add_u32 v{vVw}, v{vT0}, 2, v{vVw}
        s_lshl_b32 s{sF}, s{sW}, 6
        s_add_u32 s{sF}, s{sF}, {L_VEC}
        v_add_u32 v{vVw}, s{sF}, v{vVw}
        v_lshrrev_b32 v{vT0}, 3, v{vL}
        s_lshl_b32 s{sF}, s{sW}, 5
        s_add_u32 s{sF}, s{sF}, {L_VEC+256}
        v_lshl_add_u32 v{vVb}, v{vT0}, 2, s{sF}
        v_lshlrev_b32 v{vVr}, 3, v{vG}
        v_add_u32 v{vVr}, {L_VEC}, v{vVr}
        v_lshlrev_b32 v{vFo}, 4, v{vG}
        v_add_u32 v{vTRa}, {L_WO-L_WG}, v{vTRa}
        """)
        waitflag(F_W)
        for kk in range(6):
            for hh in range(2):
                a(f"ds_read_b64_tr_b16 {vr(vW+4*kk+2*hh,2)}, v{vTRa} offset:{kk*4096+hh*2048}")
    poll(hissue, list(range(vH, vH + 28)), pre_check=hpre)
    stamp("att", "hok")
    m0, l0, m1, l1, Bv = vH + 16, vH + 17, vH + 20, vH + 21, vH + 24
    a(f"""
    v_max_f32 v{vT0}, v{m0}, v{m1}
    v_add_f32_dpp v{Bv}, v{Bv}, v{Bv} quad_perm:[1,0,3,2] row_mask:0xf bank_mask:0xf
    v_add_f32_dpp v{Bv+1}, v{Bv+1}, v{Bv+1} quad_perm:[1,0,3,2] row_mask:0xf bank_mask:0xf
    v_max_f32_dpp v{vT0}, v{vT0}, v{vT0} row_ror:4 row_mask:0xf bank_mask:0xf
    v_add_f32_dpp v{Bv+2}, v{Bv+2}, v{Bv+2} quad_perm:[1,0,3,2] row_mask:0xf bank_mask:0xf
    v_add_f32_dpp v{Bv+3}, v{Bv+3}, v{Bv+3} quad_perm:[1,0,3,2] row_mask:0xf bank_mask:0xf
    v_max_f32_dpp v{vT0}, v{vT0}, v{vT0} row_ror:8 row_mask:0xf bank_mask:0xf
    v_add_f32_dpp v{Bv}, v{Bv}, v{Bv} quad_perm:[2,3,0,1] row_mask:0xf bank_mask:0xf
    v_mov_b32 v{vT1}, v{vT0}
    v_add_f32_dpp v{Bv+1}, v{Bv+1}, v{Bv+1} quad_perm:[2,3,0,1] row_mask:0xf bank_mask:0xf
    v_add_f32_dpp v{Bv+2}, v{Bv+2}, v{Bv+2} quad_perm:[2,3,0,1] row_mask:0xf bank_mask:0xf
    v_permlane16_swap_b32 v{vT0}, v{vT1}
    v_add_f32_dpp v{Bv+3}, v{Bv+3}, v{Bv+3} quad_perm:[2,3,0,1] row_mask:0xf bank_mask:0xf
    v_max_f32 v{vT0}, v{vT0}, v{vT1}
    v_add_f32_dpp v{Bv}, v{Bv}, v{Bv} row_half_mirror row_mask:0xf bank_mask:0xf
    v_mov_b32 v{vT1}, v{vT0}
    v_add_f32_dpp v{Bv+1}, v{Bv+1}, v{Bv+1} row_half_mirror row_mask:0xf bank_mask:0xf
    v_add_f32_dpp v{Bv+2}, v{Bv+2}, v{Bv+2} row_half_mirror row_mask:0xf bank_mask:0xf
    v_permlane32_swap_b32 v{vT0}, v{vT1}
    v_add_f32_dpp v{Bv+3}, v{Bv+3}, v{Bv+3} row_half_mirror row_mask:0xf bank_mask:0xf
    v_max_f32 v{vT0}, v{vT0}, v{vT1}
    v_cvt_pk_bf16_f32 v{vT2}, v{Bv}, v{Bv+1}
    v_sub_f32 v{m0}, v{m0}, v{vT0}
    v_sub_f32 v{m1}, v{m1}, v{vT0}
    v_cvt_pk_bf16_f32 v{vT3}, v{Bv+2}, v{Bv+3}
    v_exp_f32 v{m0}, v{m0}
    v_exp_f32 v{m1}, v{m1}
    v_lshlrev_b32 v{Bv}, 16, v{vT2}
    v_and_b32 v{Bv+1}, 0xffff0000, v{vT2}
    v_lshlrev_b32 v{Bv+2}, 16, v{vT3}
    v_and_b32 v{Bv+3}, 0xffff0000, v{vT3}
    v_mul_f32 v{l0}, v{m0}, v{l0}
    v_mul_f32 v{Bv}, v{Bv}, v{Bv+2}
    v_mul_f32 v{Bv+1}, v{Bv+1}, v{Bv+3}
    v_fmac_f32 v{l0}, v{m1}, v{l1}
    """)
    for e in range(8): a(f"v_mul_f32 v{vH+e}, v{m0}, v{vH+e}")
    a(f"v_cvt_pk_bf16_f32 v{Bv}, v{Bv}, v{Bv+1}")
    for e in range(8): a(f"v_fmac_f32 v{vH+e}, v{m1}, v{vH+8+e}")
    a(f"v_mov_b32 v{vT1}, v{l0}")
    setexec(0x01010101, 0x01010101)
    a(f"ds_write_b32 v{vVb}, v{Bv}")
    fullexec()
    a(f"v_permlane32_swap_b32 v{l0}, v{vT1}")
    for e in range(4): a(f"v_permlane32_swap_b32 v{vH+e}, v{vH+4+e}")
    a(f"v_add_f32 v{l0}, v{l0}, v{vT1}")
    for e in range(4): a(f"v_add_f32 v{vH+e}, v{vH+e}, v{vH+4+e}")
    a(f"""
    v_mov_b32 v{vT1}, v{l0}
    v_permlane16_swap_b32 v{vH}, v{vH+2}
    v_permlane16_swap_b32 v{vH+1}, v{vH+3}
    v_permlane16_swap_b32 v{l0}, v{vT1}
    v_add_f32 v{vH}, v{vH}, v{vH+2}
    v_add_f32 v{vH+1}, v{vH+1}, v{vH+3}
    v_add_f32 v{l0}, v{l0}, v{vT1}
    """)
    for rot in (8, 4):
        for x in (l0, vH, vH + 1):
            a(f"v_add_f32_dpp v{x}, v{x}, v{x} row_ror:{rot} row_mask:0xf bank_mask:0xf")
    a(f"""
    v_rcp_f32 v{l0}, v{l0}
    v_mul_f32 v{vH}, v{vH}, v{l0}
    v_mul_f32 v{vH+1}, v{vH+1}, v{l0}
    v_cvt_pk_bf16_f32 v{vH}, v{vH}, v{vH+1}
    """)
    setexec(0x000F000F, 0x000F000F)
    a(f"ds_write_b32 v{vVw}, v{vH}")
    addflag(C_VEC)
    if o["fcm"]:
        a(f"""
        s_and_b32 s{sA}, s{sC}, 7
        s_lshl_b32 s{sA}, s{sA}, 2
        s_add_u32 s{sA}, s{sA}, s{sW}
        s_lshl_b32 s{sA}, s{sA}, 11
        s_lshl_b32 s{sB}, s{sG}, 2
        s_lshr_b32 s{sCc}, s{sC}, 3
        s_add_u32 s{sB}, s{sB}, s{sCc}
        s_lshl_b32 s{sB}, s{sB}, 6
        s_add_u32 s{sA}, s{sA}, s{sB}
        s_add_u32 s{sA}, s{sA}, {WS_FIN}
        """)
    else:
        a(f"""
        s_lshl_b32 s{sA}, s{sC}, 3
        s_add_u32 s{sA}, s{sA}, s{sG}
        s_lshl_b32 s{sA}, s{sA}, 8
        s_lshl_b32 s{sB}, s{sW}, 6
        s_add_u32 s{sA}, s{sA}, s{sB}
        s_add_u32 s{sA}, s{sA}, {WS_FIN}
        """)
    waitflag(C_VEC, 4)
    stamp("att", "vec")
    a("; ---- [o | h] (192) x [wo ; wd] tile (192 x 16 columns per wave)")
    for kk in range(6):
        a(f"ds_read2_b64 {vr(vBf+4*kk,4)}, v{vVr} offset0:{8*kk} offset1:{8*kk+4}")
    for kk in range(6):
        a(f"s_waitcnt lgkmcnt({5-kk})")
        a(f"v_mfma_f32_16x16x32_bf16 {vr(vAcc,4)}, {vr(vW+4*kk,4)}, {vr(vBf+4*kk,4)}, {'0' if kk==0 else vr(vAcc,4)}")
    for e in range(4): a(f"v_and_or_b32 v{vPub+e}, v{vAcc+e}, v{vMASK}, s{sT[e]}")
    setexec(0x00010001, 0x00010001)
    a(f"buffer_store_dwordx4 {vr(vPub,4)}, v{vFo}, {srd(sWS)}, s{sA} offen {o['fst']}\ns_waitcnt vmcnt(0)")
    addflag(C_FIN)
    stamp("att", "finpub")
    a("L_fin:")
    if stamps:
        nmax = max(len(names["att"]), len(names["com"]))
        assert ST0 + 2*nmax + 1 < 102, nmax
        a(f"s_mov_b64 exec, -1\ns_memrealtime s[{ST0+2*nmax}:{ST0+2*nmax+1}]")
        a(f"s_waitcnt lgkmcnt(0)\nv_mov_b32 v{vT0}, 0")
        for i in range(nmax + 1): a(f"v_writelane_b32 v{vT0}, s{ST0+2*i}, {i}")
        a(f"""
        s_mul_i32 s{sA}, s2, 1280
        s_lshl_b32 s{sB}, s{sW}, 8
        s_add_u32 s{sA}, s{sA}, s{sB}
        s_add_u32 s{sA}, s{sA}, {WS_DBG}
        v_lshlrev_b32 v{vT1}, 2, v{vL}
        buffer_store_dword v{vT0}, v{vT1}, {srd(sWS)}, s{sA} offen
        """)
    a("L_end:\ns_endpgm")
    nv = V.hi
    txt = HEADER + f"; @launch grid=(256,1,1) block=(320,1,1) lds={LDS_SIZE}\n"
    txt += '.amdgcn_target "amdgcn-amd-amdhsa--gfx950"\n.text\n'
    txt += f".globl {KNAME}\n.p2align 8\n.type {KNAME},@function\n{KNAME}:\n" + a.text()
    nvr = (nv + 7) // 8 * 8
    txt += f""".section .rodata,"a"
.p2align 6
.amdhsa_kernel {KNAME}
  .amdhsa_next_free_vgpr {nvr}
  .amdhsa_next_free_sgpr 102
  .amdhsa_accum_offset {nvr}
  .amdhsa_group_segment_fixed_size 0
  .amdhsa_kernarg_size 96
  .amdhsa_user_sgpr_count 2
  .amdhsa_user_sgpr_kernarg_segment_ptr 1
  .amdhsa_system_sgpr_workgroup_id_x 1
.end_amdhsa_kernel
"""
    return txt, names, nv

if __name__ == "__main__":
    nm = sys.argv[1] if len(sys.argv) > 1 else "fin"; kw = {}
    for x in sys.argv[2:]:
        k, v = x.split("=", 1); kw[k] = eval(v)
    t, names, nv = gen(opts=kw); open(f"exp/{nm}.s", "w").write(t)
    kd = dict(kw); kd["cap"] = 20000
    t, names, nv = gen(stamps=True, opts=kd); open(f"exp/{nm}_st.s", "w").write(t)
    json.dump(names, open(f"exp/{nm}_names.json", "w"))
    t, n2, nv = gen(stamps="lite", opts=kd); open(f"exp/{nm}_lt.s", "w").write(t)
    print(nm, kw, "vgprs", nv, "lds", LDS_SIZE)
```
